```python
import torch

def _softmax(x, axis=-1):
    return torch.softmax(x, dim=axis)

def _gelu(x):
    return torch.nn.functional.gelu(x, approximate='tanh')

def _silu(x):
    return torch.nn.functional.silu(x)

def _sigmoid(x):
    return torch.sigmoid(x)

def _layernorm(x, axis=-1, eps=1e-05):
    m = x.mean(dim=axis, keepdim=True)
    v = x.var(dim=axis, keepdim=True, unbiased=False)
    return (x - m) / torch.sqrt(v + eps)

def _scatter_add(tgt, idx, src, axis=0):
    return tgt.clone().index_add_(axis, idx, src)

def _segment_sum(src, seg, n):
    out = torch.zeros((n,) + src.shape[1:], dtype=src.dtype)
    return out.index_add_(0, seg, src)

def _pad(x, pw):
    flat = tuple((v for pair in reversed(pw) for v in pair))
    return torch.nn.functional.pad(x, flat)
kernel_name = 'standalone__tree_speculative_verify_tree_attention_over_candidate_token_tree__decode'

def setup_inputs():

    _w = lambda a: (lambda t: t.to(torch.bfloat16) if t.is_floating_point() else t)(torch.as_tensor(a))
    B, Hq, Hkv, T, C, D = (2, 32, 4, 1, 32768, 128)
    tree_mask = torch.zeros((B, T, T), dtype=float)
    for b in range(B):
        parent = torch.zeros(T, dtype=torch.int64)
        for i in range(1, T):
            parent[i] = int(torch.randint(0, i, (1,)).item())
        for i in range(T):
            j = i
            tree_mask[b, i, j] = 1.0
            while j > 0:
                j = parent[j]
                tree_mask[b, i, j] = 1.0
    return {'q': _w((lambda *s: torch.randn(*s, dtype=torch.bfloat16) * 0.8)(B, Hq, T, D)), 'k_cache': _w((lambda *s: torch.randn(*s, dtype=torch.bfloat16) * 0.8)(B, Hkv, C, D)), 'v_cache': _w((lambda *s: torch.randn(*s, dtype=torch.bfloat16) * 0.05)(B, Hkv, C, D)), 'k_tree': _w((lambda *s: torch.randn(*s, dtype=torch.bfloat16) * 0.8)(B, Hkv, T, D)), 'v_tree': _w((lambda *s: torch.randn(*s, dtype=torch.bfloat16) * 0.05)(B, Hkv, T, D)), 'tree_mask': _w(tree_mask)}

def reference(q, k_cache, v_cache, k_tree, v_tree, tree_mask):
    B, Hq, T, D = q.shape
    Hkv, C = (k_cache.shape[1], k_cache.shape[2])
    rep = Hq // Hkv
    kc = (lambda x, n, axis: torch.repeat_interleave(x, n, dim=axis))(k_cache, rep, axis=1)
    vc = (lambda x, n, axis: torch.repeat_interleave(x, n, dim=axis))(v_cache, rep, axis=1)
    kt = (lambda x, n, axis: torch.repeat_interleave(x, n, dim=axis))(k_tree, rep, axis=1)
    vt = (lambda x, n, axis: torch.repeat_interleave(x, n, dim=axis))(v_tree, rep, axis=1)
    k = torch.concatenate([kc, kt], axis=2)
    v = torch.concatenate([vc, vt], axis=2)
    scale = D ** (-0.5)
    scores = torch.einsum('bhqd,bhkd->bhqk', q, k) * scale
    ctx_mask = torch.ones((B, 1, T, C), dtype=scores.dtype)
    tm = tree_mask[:, None, :, :].clone()
    full_mask = torch.concatenate([ctx_mask, tm], axis=-1)
    scores = scores + (1.0 - full_mask) * -1000000000.0
    p = _softmax(scores, axis=-1)
    return torch.einsum('bhqk,bhkd->bhqd', p, v)
```

```python
import sys, math

NAME = "standalone__tree_speculative_verify_tree_attention_over_candidate_token_tree__decode"

HEADER = """; Kernarg layout for this problem (72 bytes, ptrs only, base s[0:1]):
"""

import struct
def f2u(x):
    return struct.unpack("<I", struct.pack("<f", x))[0]

SCALE = 128 ** -0.5
LOG2E = math.log2(math.e)
C_SC = f2u(SCALE * LOG2E)
C_MASK = f2u(-1.0e9 * LOG2E)

PO_BYTES = 8 * 131072
ML_OFF = PO_BYTES
ML_BYTES = 64 * 256
WS_BYTES = PO_BYTES + ML_BYTES
SENT = 0xFFFFFFFF


class Asm:
    def __init__(self):
        self.lines = []
    def __call__(self, s=""):
        for ln in s.split("\n"):
            ln = ln.rstrip()
            if ln.strip().endswith(":") or ln.startswith("."):
                self.lines.append(ln.strip())
            else:
                self.lines.append("    " + ln.strip() if ln.strip() else "")
    def text(self):
        return "\n".join(self.lines) + "\n"


def vr(a, n=1):
    return f"v{a}" if n == 1 else f"v[{a}:{a+n-1}]"


def srd(a, d, base, nbytes):
    a(f"s_mov_b32 s{d}, s{base}")
    a(f"s_and_b32 s{d+1}, s{base+1}, 0xffff")
    a(f"s_mov_b32 s{d+2}, {nbytes:#x}")
    a(f"s_mov_b32 s{d+3}, 0x20000")


def stamp(a, o, idx):
    if o["stamp"]:
        a(f"s_memrealtime s[{70+2*idx}:{71+2*idx}]")


def tree_part(a, o, sG, sH, sGq, R):
    lane, t0, t1 = R["lane"], R["t0"], R["t1"]
    a(f"s_lshl_b32 s60, s{sG}, 3")
    a(f"s_add_u32 s60, s60, s{sH}")
    a(f"s_lshl_b32 s60, s60, 8")
    a(f"s_lshl_b32 s61, s{sG}, 8")
    a(f"v_lshlrev_b32 v{t0}, 2, v{lane}")
    a(f"buffer_load_dword v{R['q2']}, v{t0}, s[32:35], s60 offen")
    a(f"buffer_load_dword v{R['k2']}, v{t0}, s[48:51], s61 offen")
    a(f"v_mov_b32 v{t1}, 0")
    a(f"buffer_load_dword v{R['mk']}, v{t1}, s[56:59], 0 offen")
    a(f"s_lshr_b32 s62, s{sG}, 2")
    a(f"s_lshl_b32 s62, s62, 4")
    a(f"v_and_b32 v{t0}, 7, v{lane}")
    a(f"v_xor_b32 v{t0}, s{sH}, v{t0}")
    a(f"v_lshlrev_b32 v{t0}, 1, v{t0}")
    a(f"s_lshl_b32 s63, s{sGq}, 6")
    a(f"s_add_u32 s63, s63, s61")
    for r in range(4):
        a(f"buffer_load_ushort v{R['vt']+r}, v{t0}, s[52:55], s63 offen offset:{16*r}")


def xlane_sum_all(a, regs, t, steps, op="v_add_f32"):
    n = len(regs)
    for st in steps:
        if st == 1:
            mod = "quad_perm:[1,0,3,2]"
        elif st == 2:
            mod = "quad_perm:[2,3,0,1]"
        elif st == 4:
            mod = "row_ror:4"
        elif st == 8:
            mod = "row_ror:8"
        if st <= 8:
            for r in regs:
                a(f"{op}_dpp v{r}, v{r}, v{r} {mod} row_mask:0xf bank_mask:0xf")
            if n < 3:
                a(f"s_nop {2 - n}")
        else:
            swp = "v_permlane16_swap_b32" if st == 16 else "v_permlane32_swap_b32"
            for i, r in enumerate(regs):
                a(f"v_mov_b32 v{t+i}, v{r}")
            a("s_nop 1")
            for i, r in enumerate(regs):
                a(f"{swp} v{r}, v{t+i}")
            a("s_nop 1")
            for i, r in enumerate(regs):
                a(f"{op} v{r}, v{r}, v{t+i}")
            a("s_nop 1")


def tree_score(a, o, R):
    q2, k2, mk, st, t0, t1 = R["q2"], R["k2"], R["mk"], R["st"], R["t0"], R["t1"]
    a(f"v_lshlrev_b32 v{t0}, 16, v{q2}")
    a(f"v_lshlrev_b32 v{t1}, 16, v{k2}")
    a(f"v_mul_f32 v{st}, v{t0}, v{t1}")
    a(f"v_and_b32 v{t0}, 0xffff0000, v{q2}")
    a(f"v_and_b32 v{t1}, 0xffff0000, v{k2}")
    a(f"v_fmac_f32 v{st}, v{t0}, v{t1}")
    a(f"v_lshrrev_b32 v{mk}, s62, v{mk}")
    a(f"v_lshlrev_b32 v{mk}, 16, v{mk}")
    a(f"v_sub_f32 v{mk}, 1.0, v{mk}")
    xlane_sum_all(a, [st], t0, [1, 2, 4, 8, 16, 32])
    a(f"v_mul_f32 v{mk}, {C_MASK:#x}, v{mk}")
    a(f"v_mul_f32 v{st}, {C_SC:#x}, v{st}")
    a(f"v_add_f32 v{st}, v{st}, v{mk}")
    for r in range(4):
        a(f"v_lshlrev_b32 v{R['vt']+r}, 16, v{R['vt']+r}")


def combine_loads(a, o, sG, sC, sH, R, sc):
    for k in range(4):
        a(f"buffer_load_dwordx4 {vr(R['X']+4*k,4)}, v{R['ox']}, s[36:39], s64 offen offset:{128*k} {sc}")
    for k in range(2):
        a(f"buffer_load_dwordx4 {vr(R['ML']+4*k,4)}, v{R['om']}, s[36:39], s65 offen offset:{16*k} {sc}")


def combine_addr(a, o, sG, sC, sH, R):
    lane = R["lane"]
    a(f"v_lshrrev_b32 v{R['om']}, 3, v{lane}")
    a(f"v_lshlrev_b32 v{R['ox']}, 9, v{R['om']}")
    a(f"v_and_b32 v{R['t0']}, 7, v{lane}")
    a(f"v_lshl_add_u32 v{R['ox']}, v{R['t0']}, 4, v{R['ox']}")
    a(f"v_lshlrev_b32 v{R['om']}, 5, v{R['om']}")
    a(f"s_lshl_b32 s64, s{sG}, 17")
    a(f"s_lshl_b32 s65, s{sC}, 12")
    a(f"s_add_u32 s64, s64, s65")
    a(f"s_lshl_b32 s65, s{sG}, 3")
    a(f"s_add_u32 s65, s65, s{sH}")
    a(f"s_lshl_b32 s65, s65, 8")
    a(f"s_add_u32 s65, s65, {ML_OFF:#x}")


def combine_math(a, o, sG, sH, sGq, R):
    X, ML, st, vt, t0 = R["X"], R["ML"], R["st"], R["vt"], R["t0"]
    M, L, F, O, T = R["M"], R["L"], R["F"], R["O"], R["T"]
    lane = R["lane"]
    a(f"v_max3_f32 v{M}, v{ML}, v{ML+2}, v{st}")
    a(f"v_max3_f32 v{M}, v{ML+4}, v{ML+6}, v{M}")
    a("s_nop 1")
    xlane_sum_all(a, [M], T, [8, 16, 32], op="v_max_f32")
    for k in range(4):
        a(f"v_sub_f32 v{F+k}, v{ML+2*k}, v{M}")
    a(f"v_sub_f32 v{F+4}, v{st}, v{M}")
    for k in range(5):
        a(f"v_exp_f32 v{F+k}, v{F+k}")
    a("s_nop 0")
    a(f"v_mul_f32 v{L}, v{F}, v{ML+1}")
    for r in range(4):
        a(f"v_mul_f32 v{O+r}, v{F}, v{X+r}")
    for k in range(1, 4):
        a(f"v_fmac_f32 v{L}, v{F+k}, v{ML+2*k+1}")
        for r in range(4):
            a(f"v_fmac_f32 v{O+r}, v{F+k}, v{X+4*k+r}")
    a("s_nop 1")
    xlane_sum_all(a, [L, O, O+1, O+2, O+3], T, [8, 16, 32])
    a(f"v_add_f32 v{L}, v{L}, v{F+4}")
    a(f"v_rcp_f32 v{L}, v{L}")
    for r in range(4):
        a(f"v_fmac_f32 v{O+r}, v{F+4}, v{vt+r}")
    for r in range(4):
        a(f"v_mul_f32 v{O+r}, v{O+r}, v{L}")
    a(f"v_cvt_pk_bf16_f32 v{O}, v{O}, v{O+1}")
    a(f"v_cvt_pk_bf16_f32 v{O+2}, v{O+2}, v{O+3}")
    a(f"v_and_b32 v{t0}, 7, v{lane}")
    a(f"v_xor_b32 v{t0}, s{sH}, v{t0}")
    a(f"v_lshlrev_b32 v{t0}, 1, v{t0}")
    a(f"s_lshl_b32 s66, s{sG}, 3")
    a(f"s_add_u32 s66, s66, s{sH}")
    a(f"s_lshl_b32 s66, s66, 8")
    a(f"s_lshl_b32 s67, s{sGq}, 6")
    a(f"s_add_u32 s66, s66, s67")
    a("s_mov_b64 exec, 0xff")
    a(f"buffer_store_short v{O}, v{t0}, s[44:47], s66 offen")
    a(f"buffer_store_short_d16_hi v{O}, v{t0}, s[44:47], s66 offen offset:16")
    a(f"buffer_store_short v{O+2}, v{t0}, s[44:47], s66 offen offset:32")
    a(f"buffer_store_short_d16_hi v{O+2}, v{t0}, s[44:47], s66 offen offset:48")


def ids(a, o):
    if o["map"] == 0:
        a("s_lshr_b32 s22, s2, 5")
        a("s_and_b32 s23, s2, 31")
    else:
        a("s_and_b32 s22, s2, 7")
        a("s_lshr_b32 s23, s2, 3")


def main_kernel(a, o, label):
    nt = o["nt"]
    sc = "sc1" if o["mode"] != "two" else ""
    DATA = 0
    TID, VK, VV, TMP = 0, 1, 2, 3
    D0 = 4
    S0 = 132
    Q0 = 164
    O0 = 172
    L0 = 204
    W0 = 208
    ONE = 240
    MX = 244
    a(f".p2align 8")
    a(f".type {label},@function")
    a(f"{label}:")
    a("s_cmp_ge_u32 s2, 256")
    a("s_cbranch_scc1 L_main_end")
    a("s_load_dwordx16 s[4:19], s[0:1], 0")
    a("s_load_dwordx2 s[20:21], s[0:1], 64")
    stamp(a, o, 0)
    ids(a, o)
    a(f"v_lshrrev_b32 v{TMP}, 6, v0")
    if o["ilv"] == 0:
        a(f"v_lshlrev_b32 v{TMP}, 15, v{TMP}")
    else:
        a(f"v_lshlrev_b32 v{TMP}, {10 + o['ilv'] - 1}, v{TMP}")
    a(f"v_and_b32 v{MX}, 63, v0")
    a(f"v_lshl_add_u32 v{VV}, v{MX}, 4, v{TMP}")
    a(f"v_bfe_u32 v{MX+1}, v0, 2, 2")
    a(f"v_lshl_add_u32 v{VK}, v{MX+1}, 8, v{TMP}")
    a(f"v_bfe_u32 v{MX+1}, v0, 4, 2")
    a(f"v_lshl_add_u32 v{VK}, v{MX+1}, 6, v{VK}")
    a(f"v_and_b32 v{MX+2}, 3, v0")
    a(f"v_lshl_add_u32 v{VK}, v{MX+2}, 4, v{VK}")
    a(f"v_and_b32 v{MX+2}, 7, v0")
    a(f"v_lshlrev_b32 v{MX+2}, 8, v{MX+2}")
    a(f"v_lshl_add_u32 v{MX+2}, v{MX+1}, 6, v{MX+2}")
    a(f"v_bfe_u32 v{MX+3}, v0, 3, 1")
    a(f"v_lshl_add_u32 v{MX+2}, v{MX+3}, 4, v{MX+2}")
    def ld_off(i):
        if o["ilv"] == 0:
            return (i >> 2) * 4096, (i & 3) * 1024
        blk = 1 << (o["ilv"] - 1)
        off = (i // blk) * blk * 8 * 1024 + (i % blk) * 1024
        return off & ~4095, off & 4095
    soffs = sorted({ld_off(i)[0] for i in range(32)} - {0})
    assert len(soffs) <= 31
    SO = {0: "0"}
    for n, s in enumerate(soffs):
        SO[s] = f"s{70+n}" if not o["stamp"] else f"s{68+n}"
    if o["stamp"]:
        assert len(soffs) <= 7
        for n, s in enumerate(soffs):
            SO[s] = f"s{90+n}"
    for s in soffs:
        a(f"s_mov_b32 {SO[s]}, {s:#x}")
    a("s_lshl_b32 s3, s22, 23")
    a("s_lshl_b32 s40, s23, 18")
    a("s_add_u32 s3, s3, s40")
    a("s_lshl_b32 s41, s22, 11")
    a("s_mov_b32 s26, 0x40000")
    a("s_mov_b32 s27, 0x20000")
    a("s_mov_b32 s30, 0x40000")
    a("s_mov_b32 s31, 0x20000")
    a("s_mov_b32 s34, 0x4000")
    a("s_mov_b32 s35, 0x20000")
    a("s_waitcnt lgkmcnt(0)")
    stamp(a, o, 1)
    a("s_add_u32 s24, s6, s3")
    a("s_addc_u32 s25, s7, 0")
    a("s_mov_b32 s32, s4")
    a("s_mov_b32 s33, s5")
    a(f"buffer_load_dwordx4 {vr(Q0,4)}, v{MX+2}, s[32:35], s41 offen")
    a(f"buffer_load_dwordx4 {vr(Q0+4,4)}, v{MX+2}, s[32:35], s41 offen offset:32")
    for i in range(32):
        so, im = ld_off(i)
        a(f"buffer_load_dwordx4 {vr(D0+4*i,4)}, v{VK}, s[24:27], {SO[so]} offen offset:{im} {nt}")
    stamp(a, o, 2)
    a("s_add_u32 s28, s8, s3")
    a("s_addc_u32 s29, s9, 0")
    srd(a, 36, 20, WS_BYTES)
    a("s_mov_b32 s42, 0x05040100")
    a("s_mov_b32 s43, 0x07060302")
    a(f"s_mov_b32 s68, {C_SC:#x}")
    for r in range(4):
        a(f"v_mov_b32 v{ONE+r}, 0x3f803f80")
    a(f"v_and_b32 v{MX+1}, 15, v0")
    a(f"v_lshrrev_b32 v{MX+3}, 6, v0")
    a(f"v_lshlrev_b32 v{MX+4}, 5, v{MX+1}")
    a(f"v_add_u32 v{MX+4}, 0x8000, v{MX+4}")
    a(f"v_lshl_add_u32 v{MX+5}, v{MX+3}, 2, v{MX+4}")
    a(f"v_and_b32 v{MX+6}, 7, v0")
    a(f"v_mul_u32_u24 v{MX+6}, 528, v{MX+6}")
    a(f"v_lshl_add_u32 v{MX+6}, v{MX+3}, 12, v{MX+6}")
    a(f"v_bfe_u32 v{MX+7}, v0, 4, 2")
    a(f"v_lshl_add_u32 v{MX+6}, v{MX+7}, 7, v{MX+6}")
    T0 = W0
    for b in range(8):
        a("s_waitcnt vmcnt(28)")
        if b == 0:
            stamp(a, o, 3)
        for k in range(4):
            i = 4 * b + k
            a(f"v_mfma_f32_16x16x32_bf16 {vr(T0+6*k+2,4)}, {vr(D0+4*i,4)}, {vr(Q0,4)}, 0")
        a("s_nop 2")
        for k in range(4):
            i = 4 * b + k
            a(f"v_mfma_f32_16x16x32_bf16 {vr(T0+6*k,4)}, {vr(D0+4*i,4)}, {vr(Q0+4,4)}, {vr(T0+6*k,4)}")
        for k in range(4):
            i = 4 * b + k
            so, im = ld_off(i)
            a(f"buffer_load_dwordx4 {vr(D0+4*i,4)}, v{VV}, s[28:31], {SO[so]} offen offset:{im} {nt}")
        a("s_nop 0")
        for k in range(4):
            i = 4 * b + k
            if k > 0:
                pass
            a(f"v_add_f32_dpp v{S0+i}, v{T0+6*k+3}, v{T0+6*k+2} row_ror:8 row_mask:0xf bank_mask:0xf")
    stamp(a, o, 4)
    M = MX + 8
    a(f"v_max3_f32 v{M}, v{S0}, v{S0+1}, v{S0+2}")
    for i in range(3, 31, 2):
        a(f"v_max3_f32 v{M}, v{S0+i}, v{S0+i+1}, v{M}")
    a(f"v_max_f32 v{M}, v{S0+31}, v{M}")
    a("s_nop 1")
    xlane_sum_all(a, [M], MX + 9, [16, 32], op="v_max_f32")
    a(f"ds_write_b32 v{MX+5}, v{M}")
    a("s_waitcnt lgkmcnt(0)")
    a("s_barrier")
    a(f"ds_read_b128 {vr(W0,4)}, v{MX+4}")
    a(f"ds_read_b128 {vr(W0+4,4)}, v{MX+4} offset:16")
    a("s_waitcnt lgkmcnt(0)")
    a(f"v_max3_f32 v{M}, v{W0}, v{W0+1}, v{W0+2}")
    a(f"v_max3_f32 v{M}, v{W0+3}, v{W0+4}, v{M}")
    a(f"v_max3_f32 v{M}, v{W0+5}, v{W0+6}, v{M}")
    a(f"v_max_f32 v{M}, v{W0+7}, v{M}")
    a(f"v_mul_f32 v{M}, s68, v{M}")
    for i in range(32):
        a(f"v_fma_f32 v{S0+i}, v{S0+i}, s68, -v{M}")
    for i in range(32):
        a(f"v_exp_f32 v{S0+i}, v{S0+i}")
    a("s_nop 0")
    for k in range(16):
        a(f"v_cvt_pk_bf16_f32 v{S0+k}, v{S0+2*k}, v{S0+2*k+1}")
    stamp(a, o, 5)
    for t in range(4):
        a(f"s_waitcnt vmcnt({24 - 8*t})")
        P = S0 + 4 * t
        for u in range(4):
            for half in range(2):
                j = 2 * u + half
                for m in range(4):
                    va = D0 + 4 * (8 * t + 2 * m) + u
                    vb = D0 + 4 * (8 * t + 2 * m + 1) + u
                    a(f"v_perm_b32 v{W0+4*j+m}, v{vb}, v{va}, s{42+half}")
            if u >= 1:
                for j in (2 * u - 2, 2 * u - 1):
                    c = "0" if t == 0 else vr(O0 + 4 * j, 4)
                    a(f"v_mfma_f32_16x16x32_bf16 {vr(O0+4*j,4)}, {vr(W0+4*j,4)}, {vr(P,4)}, {c}")
        c = "0" if t == 0 else vr(L0, 4)
        a(f"v_mfma_f32_16x16x32_bf16 {vr(L0,4)}, {vr(ONE,4)}, {vr(P,4)}, {c}")
        a("s_nop 0")
        for j in (6, 7):
            c = "0" if t == 0 else vr(O0 + 4 * j, 4)
            a(f"v_mfma_f32_16x16x32_bf16 {vr(O0+4*j,4)}, {vr(W0+4*j,4)}, {vr(P,4)}, {c}")
    stamp(a, o, 6)
    for j in range(1, 8):
        a(f"v_xor_b32 v{W0+j}, {j<<4}, v{MX+6}")
    a(f"v_mov_b32 v{W0}, v{MX+6}")
    a(f"ds_write_b32 v{MX+5}, v{L0} offset:512")
    a("s_mov_b32 s44, 0x00ff00ff")
    a("s_mov_b32 s45, 0x00ff00ff")
    a("s_mov_b64 exec, s[44:45]")
    for j in range(8):
        a(f"ds_write_b128 v{W0+j}, {vr(O0+4*j,4)}")
    a("s_mov_b64 exec, -1")
    a(f"v_lshlrev_b32 v{MX+7}, 4, v0")
    a(f"v_lshrrev_b32 v{TMP}, 3, v0")
    a(f"v_lshlrev_b32 v{TMP}, 12, v{TMP}")
    a(f"v_and_b32 v{VK}, 7, v0")
    a(f"v_lshl_add_u32 v{TMP}, v{VK}, 4, v{TMP}")
    a("s_lshl_b32 s46, s22, 17")
    a("s_lshl_b32 s47, s23, 7")
    a("s_add_u32 s46, s46, s47")
    a(f"v_readfirstlane_b32 s47, v{MX+3}")
    a("s_waitcnt lgkmcnt(0)")
    a("s_barrier")
    a("s_cmp_lt_u32 s47, 4")
    a("s_cbranch_scc0 L_not_ored")
    for w in range(8):
        a(f"ds_read_b128 {vr(D0+4*w,4)}, v{MX+7} offset:{4096*w}")
    for w in range(1, 8):
        a(f"s_waitcnt lgkmcnt({7-w})")
        for r in range(4):
            a(f"v_add_f32 v{D0+r}, v{D0+r}, v{D0+4*w+r}")
    a(f"buffer_store_dwordx4 {vr(D0,4)}, v{TMP}, s[36:39], s46 offen {sc}")
    a("s_branch L_main_pub_done")
    a("L_not_ored:")
    a("s_cmp_eq_u32 s47, 4")
    a("s_cbranch_scc0 L_main_pub_done")
    a(f"ds_read_b128 {vr(D0,4)}, v{MX+4} offset:512")
    a(f"ds_read_b128 {vr(D0+4,4)}, v{MX+4} offset:528")
    a(f"v_and_b32 v{VK}, 7, v0")
    a(f"v_lshlrev_b32 v{VK}, 8, v{VK}")
    a("s_lshl_b32 s46, s22, 11")
    a("s_lshl_b32 s47, s23, 3")
    a("s_add_u32 s46, s46, s47")
    a(f"s_add_u32 s46, s46, {ML_OFF:#x}")
    a("s_waitcnt lgkmcnt(0)")
    a(f"v_add_f32 v{D0+1}, v{D0}, v{D0+1}")
    a(f"v_add_f32 v{D0+2}, v{D0+2}, v{D0+3}")
    a(f"v_add_f32 v{D0+4}, v{D0+4}, v{D0+5}")
    a(f"v_add_f32 v{D0+6}, v{D0+6}, v{D0+7}")
    a(f"v_add_f32 v{D0+1}, v{D0+1}, v{D0+2}")
    a(f"v_add_f32 v{D0+4}, v{D0+4}, v{D0+6}")
    a(f"v_add_f32 v{D0+1}, v{D0+1}, v{D0+4}")
    a(f"v_mov_b32 v{D0}, v{M}")
    a("s_mov_b64 exec, 0xff")
    a(f"buffer_store_dwordx2 {vr(D0,2)}, v{VK}, s[36:39], s46 offen {sc}")
    a("s_mov_b64 exec, -1")
    a("L_main_pub_done:")
    if o["stamp"]:
        stamp(a, o, 7)
        a(f"s_cmp_eq_u32 s2, {o['stamp']-1}")
        a("s_cbranch_scc0 L_main_end")
        a(f"v_readfirstlane_b32 s47, v{MX+3}")
        a("s_nop 4")
        a("s_cmp_eq_u32 s47, 0")
        a("s_cbranch_scc0 L_main_end")
        srd(a, 52, 18, 256)
        a("s_waitcnt lgkmcnt(0)")
        a("v_mov_b32 v1, 0")
        for i in range(8):
            a(f"s_sub_u32 s60, s{70+2*i}, s70")
            a("v_mov_b32 v2, s60")
            a(f"buffer_store_dword v2, v1, s[52:55], 0 offen offset:{4*i}")
    a("L_main_end:")
    a("s_endpgm")


def comb_kernel(a, o, label):
    R = dict(lane=0, t0=1, t1=2, q2=3, k2=4, mk=5, st=6, ox=7, om=8, M=9, L=10,
             vt=12, X=16, ML=32, F=40, O=48, T=52)
    a(f".p2align 8")
    a(f".type {label},@function")
    a(f"{label}:")
    a("s_cmp_ge_u32 s2, 256")
    a("s_cbranch_scc1 L_comb_end")
    a("s_load_dwordx16 s[4:19], s[0:1], 0")
    a("s_load_dwordx2 s[20:21], s[0:1], 64")
    ids(a, o)
    a("s_lshr_b32 s40, s23, 2")
    a("s_and_b32 s41, s23, 3")
    combine_addr(a, o, 22, 23, 40, R)
    a("s_waitcnt lgkmcnt(0)")
    srd(a, 36, 20, WS_BYTES)
    combine_loads(a, o, 22, 23, 40, R, "")
    srd(a, 32, 4, 0x4000)
    srd(a, 48, 10, 2048)
    srd(a, 52, 12, 2052)
    srd(a, 56, 14, 4)
    srd(a, 44, 16, 0x4000)
    tree_part(a, o, 22, 40, 41, R)
    a("s_waitcnt vmcnt(0)")
    tree_score(a, o, R)
    combine_math(a, o, 22, 40, 41, R)
    a("L_comb_end:")
    a("s_endpgm")


def kd(a, label, vgpr, sgpr=102):
    a(f".amdhsa_kernel {label}")
    a.lines.append(f"  .amdhsa_next_free_vgpr {vgpr}")
    a.lines.append(f"  .amdhsa_next_free_sgpr {sgpr}")
    a.lines.append(f"  .amdhsa_accum_offset {(vgpr+3)//4*4}")
    a.lines.append("  .amdhsa_group_segment_fixed_size 0")
    a.lines.append("  .amdhsa_kernarg_size 72")
    a.lines.append("  .amdhsa_user_sgpr_count 2")
    a.lines.append("  .amdhsa_user_sgpr_kernarg_segment_ptr 1")
    a.lines.append("  .amdhsa_system_sgpr_workgroup_id_x 1")
    a.lines.append("  .amdhsa_float_denorm_mode_32 3")
    a(".end_amdhsa_kernel")


def gen(o):
    a = Asm()
    LDS = 32768 + 1024
    main = NAME + "_kernel"
    hdr = HEADER
    if o["mode"] == "two":
        hdr += f"; @launch kernel={main} grid=(256,1,1) block=(512,1,1) lds={LDS}\n"
        hdr += f"; @launch kernel=combine_kernel grid=(256,1,1) block=(64,1,1) lds=0\n"
    else:
        hdr += f"; @launch grid=(256,1,1) block=(512,1,1) lds={LDS}\n"
    a.lines.append(hdr.rstrip())
    a('.amdgcn_target "amdgcn-amd-amdhsa--gfx950"')
    a(".text")
    a(f".globl {main}")
    main_kernel(a, o, main)
    if o["mode"] == "two":
        a(".globl combine_kernel")
        comb_kernel(a, o, "combine_kernel")
    a('.section .rodata,"a"')
    a(".p2align 6")
    kd(a, main, 256)
    if o["mode"] == "two":
        a(".p2align 6")
        kd(a, "combine_kernel", 64)
    return a.text()


if __name__ == "__main__":
    o = dict(mode="two", nt="", map=0, ilv=0, stamp=0)
    for kv in sys.argv[2:]:
        k, v = kv.split("=")
        o[k] = int(v) if v.lstrip("-").isdigit() else v
    open(sys.argv[1], "w").write(gen(o))
```

```python
import sys, math

NAME = "standalone__tree_speculative_verify_tree_attention_over_candidate_token_tree__decode"

HEADER = """; Kernarg layout for this problem (72 bytes, ptrs only, base s[0:1]):
"""

import struct
def f2u(x):
    return struct.unpack("<I", struct.pack("<f", x))[0]

SCALE = 128 ** -0.5
LOG2E = math.log2(math.e)
C_SC = f2u(SCALE * LOG2E)
C_MASK = f2u(-1.0e9 * LOG2E)

PO_BYTES = 8 * 131072
ML_OFF = PO_BYTES
ML_BYTES = 64 * 256
WS_BYTES = PO_BYTES + ML_BYTES
SENT = 0xFFFFFFFF


class Asm:
    def __init__(self):
        self.lines = []
    def __call__(self, s=""):
        for ln in s.split("\n"):
            ln = ln.rstrip()
            if ln.strip().endswith(":") or ln.startswith("."):
                self.lines.append(ln.strip())
            else:
                self.lines.append("    " + ln.strip() if ln.strip() else "")
    def text(self):
        return "\n".join(self.lines) + "\n"


def vr(a, n=1):
    return f"v{a}" if n == 1 else f"v[{a}:{a+n-1}]"


def srd(a, d, base, nbytes):
    a(f"s_mov_b32 s{d}, s{base}")
    a(f"s_and_b32 s{d+1}, s{base+1}, 0xffff")
    a(f"s_mov_b32 s{d+2}, {nbytes:#x}")
    a(f"s_mov_b32 s{d+3}, 0x20000")


def stamp(a, o, idx):
    if o["stamp"]:
        a(f"s_memrealtime s[{70+2*idx}:{71+2*idx}]")


def dump_stamps(a, o, n, vwave, nwaves=8):
    a("s_mov_b64 exec, -1")
    a(f"v_readfirstlane_b32 s47, v{vwave}")
    a("s_mov_b32 s52, s20")
    a("s_and_b32 s53, s21, 0xffff")
    a("s_mov_b32 s54, 0x2000000")
    a("s_mov_b32 s55, 0x20000")
    a(f"s_mul_i32 s60, s2, {nwaves}")
    a("s_add_u32 s60, s60, s47")
    a("s_lshl_b32 s60, s60, 7")
    a("s_add_u32 s60, s60, 0x1000000")
    a("s_waitcnt lgkmcnt(0)")
    a("v_mov_b32 v1, 0")
    a("s_mov_b64 exec, 1")
    for i in range(n):
        a(f"v_mov_b32 v2, s{70+2*i}")
        a(f"v_mov_b32 v3, s{71+2*i}")
        a(f"buffer_store_dwordx2 v[2:3], v1, s[52:55], s60 offen offset:{8*i}")
    a(f"v_mov_b32 v2, {n}")
    a("v_mov_b32 v3, 0")
    a("buffer_store_dwordx2 v[2:3], v1, s[52:55], s60 offen offset:120")


def tree_part(a, o, sG, sH, sGq, R):
    lane, t0, t1 = R["lane"], R["t0"], R["t1"]
    a(f"s_lshl_b32 s60, s{sG}, 3")
    a(f"s_add_u32 s60, s60, s{sH}")
    a(f"s_lshl_b32 s60, s60, 8")
    a(f"s_lshl_b32 s61, s{sG}, 8")
    a(f"v_lshlrev_b32 v{t0}, 2, v{lane}")
    a(f"buffer_load_dword v{R['q2']}, v{t0}, s[32:35], s60 offen")
    a(f"buffer_load_dword v{R['k2']}, v{t0}, s[48:51], s61 offen")
    a(f"v_mov_b32 v{t1}, 0")
    a(f"buffer_load_dword v{R['mk']}, v{t1}, s[56:59], 0 offen")
    a(f"s_lshr_b32 s62, s{sG}, 2")
    a(f"s_lshl_b32 s62, s62, 4")
    a(f"v_and_b32 v{t0}, 7, v{lane}")
    a(f"v_xor_b32 v{t0}, s{sH}, v{t0}")
    a(f"v_lshlrev_b32 v{t0}, 1, v{t0}")
    a(f"s_lshl_b32 s63, s{sGq}, 6")
    a(f"s_add_u32 s63, s63, s61")
    for r in range(4):
        a(f"buffer_load_ushort v{R['vt']+r}, v{t0}, s[52:55], s63 offen offset:{16*r}")


def xlane_sum_all(a, regs, t, steps, op="v_add_f32"):
    n = len(regs)
    for st in steps:
        if st == 1:
            mod = "quad_perm:[1,0,3,2]"
        elif st == 2:
            mod = "quad_perm:[2,3,0,1]"
        elif st == 4:
            mod = "row_ror:4"
        elif st == 8:
            mod = "row_ror:8"
        if st <= 8:
            for r in regs:
                a(f"{op}_dpp v{r}, v{r}, v{r} {mod} row_mask:0xf bank_mask:0xf")
            if n < 3:
                a(f"s_nop {2 - n}")
        else:
            swp = "v_permlane16_swap_b32" if st == 16 else "v_permlane32_swap_b32"
            for i, r in enumerate(regs):
                a(f"v_mov_b32 v{t+i}, v{r}")
            a("s_nop 1")
            for i, r in enumerate(regs):
                a(f"{swp} v{r}, v{t+i}")
            a("s_nop 1")
            for i, r in enumerate(regs):
                a(f"{op} v{r}, v{r}, v{t+i}")
            a("s_nop 1")


def tree_score(a, o, R):
    q2, k2, mk, st, t0, t1 = R["q2"], R["k2"], R["mk"], R["st"], R["t0"], R["t1"]
    a(f"v_lshlrev_b32 v{t0}, 16, v{q2}")
    a(f"v_lshlrev_b32 v{t1}, 16, v{k2}")
    a(f"v_mul_f32 v{st}, v{t0}, v{t1}")
    a(f"v_and_b32 v{t0}, 0xffff0000, v{q2}")
    a(f"v_and_b32 v{t1}, 0xffff0000, v{k2}")
    a(f"v_fmac_f32 v{st}, v{t0}, v{t1}")
    a(f"v_lshrrev_b32 v{mk}, s62, v{mk}")
    a(f"v_lshlrev_b32 v{mk}, 16, v{mk}")
    a(f"v_sub_f32 v{mk}, 1.0, v{mk}")
    xlane_sum_all(a, [st], t0, [1, 2, 4, 8, 16, 32])
    a(f"v_mul_f32 v{mk}, {C_MASK:#x}, v{mk}")
    a(f"v_mul_f32 v{st}, {C_SC:#x}, v{st}")
    a(f"v_add_f32 v{st}, v{st}, v{mk}")
    for r in range(4):
        a(f"v_lshlrev_b32 v{R['vt']+r}, 16, v{R['vt']+r}")


def combine_loads(a, o, sG, sC, sH, R, sc):
    for k in range(4):
        a(f"buffer_load_dwordx4 {vr(R['X']+4*k,4)}, v{R['ox']}, s[36:39], s64 offen offset:{128*k} {sc}")
    for k in range(2):
        a(f"buffer_load_dwordx4 {vr(R['ML']+4*k,4)}, v{R['om']}, s[36:39], s65 offen offset:{16*k} {sc}")


def combine_addr(a, o, sG, sC, sH, R):
    lane = R["lane"]
    a(f"v_lshrrev_b32 v{R['om']}, 3, v{lane}")
    a(f"v_lshlrev_b32 v{R['ox']}, 9, v{R['om']}")
    a(f"v_and_b32 v{R['t0']}, 7, v{lane}")
    a(f"v_lshl_add_u32 v{R['ox']}, v{R['t0']}, 4, v{R['ox']}")
    a(f"v_lshlrev_b32 v{R['om']}, 5, v{R['om']}")
    a(f"s_lshl_b32 s64, s{sG}, 17")
    a(f"s_lshl_b32 s65, s{sC}, 12")
    a(f"s_add_u32 s64, s64, s65")
    a(f"s_lshl_b32 s65, s{sG}, 3")
    a(f"s_add_u32 s65, s65, s{sH}")
    a(f"s_lshl_b32 s65, s65, 8")
    a(f"s_add_u32 s65, s65, {ML_OFF:#x}")


def combine_math(a, o, sG, sH, sGq, R):
    X, ML, st, vt, t0 = R["X"], R["ML"], R["st"], R["vt"], R["t0"]
    M, L, F, O, T = R["M"], R["L"], R["F"], R["O"], R["T"]
    lane = R["lane"]
    a(f"v_max3_f32 v{M}, v{ML}, v{ML+2}, v{st}")
    a(f"v_max3_f32 v{M}, v{ML+4}, v{ML+6}, v{M}")
    a("s_nop 1")
    xlane_sum_all(a, [M], T, [8, 16, 32], op="v_max_f32")
    for k in range(4):
        a(f"v_sub_f32 v{F+k}, v{ML+2*k}, v{M}")
    a(f"v_sub_f32 v{F+4}, v{st}, v{M}")
    for k in range(5):
        a(f"v_exp_f32 v{F+k}, v{F+k}")
    a("s_nop 0")
    a(f"v_mul_f32 v{L}, v{F}, v{ML+1}")
    for r in range(4):
        a(f"v_mul_f32 v{O+r}, v{F}, v{X+r}")
    for k in range(1, 4):
        a(f"v_fmac_f32 v{L}, v{F+k}, v{ML+2*k+1}")
        for r in range(4):
            a(f"v_fmac_f32 v{O+r}, v{F+k}, v{X+4*k+r}")
    a("s_nop 1")
    xlane_sum_all(a, [L, O, O+1, O+2, O+3], T, [8, 16, 32])
    a(f"v_add_f32 v{L}, v{L}, v{F+4}")
    a(f"v_rcp_f32 v{L}, v{L}")
    for r in range(4):
        a(f"v_fmac_f32 v{O+r}, v{F+4}, v{vt+r}")
    for r in range(4):
        a(f"v_mul_f32 v{O+r}, v{O+r}, v{L}")
    a(f"v_cvt_pk_bf16_f32 v{O}, v{O}, v{O+1}")
    a(f"v_cvt_pk_bf16_f32 v{O+2}, v{O+2}, v{O+3}")
    a(f"v_and_b32 v{t0}, 7, v{lane}")
    a(f"v_xor_b32 v{t0}, s{sH}, v{t0}")
    a(f"v_lshlrev_b32 v{t0}, 1, v{t0}")
    a(f"s_lshl_b32 s66, s{sG}, 3")
    a(f"s_add_u32 s66, s66, s{sH}")
    a(f"s_lshl_b32 s66, s66, 8")
    a(f"s_lshl_b32 s67, s{sGq}, 6")
    a(f"s_add_u32 s66, s66, s67")
    a("s_mov_b64 exec, 0xff")
    a(f"buffer_store_short v{O}, v{t0}, s[44:47], s66 offen")
    a(f"buffer_store_short_d16_hi v{O}, v{t0}, s[44:47], s66 offen offset:16")
    a(f"buffer_store_short v{O+2}, v{t0}, s[44:47], s66 offen offset:32")
    a(f"buffer_store_short_d16_hi v{O+2}, v{t0}, s[44:47], s66 offen offset:48")


def ids(a, o):
    if o["map"] == 0:
        a("s_lshr_b32 s22, s2, 5")
        a("s_and_b32 s23, s2, 31")
    else:
        a("s_and_b32 s22, s2, 7")
        a("s_lshr_b32 s23, s2, 3")


def main_kernel(a, o, label):
    nt = o["nt"]
    sc = "sc1" if o["mode"] != "two" else ""
    DATA = 0
    TID, VK, VV, TMP = 0, 1, 2, 3
    D0 = 4
    S0 = 132
    Q0 = 164
    O0 = 172
    L0 = 204
    W0 = 208
    ONE = 240
    MX = 244
    a(f".p2align 8")
    a(f".type {label},@function")
    a(f"{label}:")
    a("s_cmp_ge_u32 s2, 256")
    a("s_cbranch_scc1 L_main_end")
    a("s_load_dwordx16 s[4:19], s[0:1], 0")
    a("s_load_dwordx2 s[20:21], s[0:1], 64")
    stamp(a, o, 0)
    if o["spin"]:
        a("s_memrealtime s[86:87]")
    ids(a, o)
    a(f"v_lshrrev_b32 v{TMP}, 6, v0")
    if o["ilv"] == 0:
        a(f"v_lshlrev_b32 v{TMP}, 15, v{TMP}")
    else:
        a(f"v_lshlrev_b32 v{TMP}, {10 + o['ilv'] - 1}, v{TMP}")
    a(f"v_and_b32 v{MX}, 63, v0")
    a(f"v_lshl_add_u32 v{VV}, v{MX}, 4, v{TMP}")
    a(f"v_bfe_u32 v{MX+1}, v0, 2, 2")
    a(f"v_lshl_add_u32 v{VK}, v{MX+1}, 8, v{TMP}")
    a(f"v_bfe_u32 v{MX+1}, v0, 4, 2")
    a(f"v_lshl_add_u32 v{VK}, v{MX+1}, 6, v{VK}")
    a(f"v_and_b32 v{MX+2}, 3, v0")
    a(f"v_lshl_add_u32 v{VK}, v{MX+2}, 4, v{VK}")
    a(f"v_and_b32 v{MX+2}, 7, v0")
    a(f"v_lshlrev_b32 v{MX+2}, 8, v{MX+2}")
    a(f"v_lshl_add_u32 v{MX+2}, v{MX+1}, 6, v{MX+2}")
    a(f"v_bfe_u32 v{MX+3}, v0, 3, 1")
    a(f"v_lshl_add_u32 v{MX+2}, v{MX+3}, 4, v{MX+2}")
    def ld_off(i):
        if o["ilv"] == 0:
            return (i >> 2) * 4096, (i & 3) * 1024
        blk = 1 << (o["ilv"] - 1)
        off = (i // blk) * blk * 8 * 1024 + (i % blk) * 1024
        return off & ~4095, off & 4095
    soffs = sorted({ld_off(i)[0] for i in range(32)} - {0})
    assert len(soffs) <= 31
    SO = {0: "0"}
    for n, s in enumerate(soffs):
        SO[s] = f"s{70+n}"
    if o["stamp"] or o["spin"]:
        assert len(soffs) <= 7
        for n, s in enumerate(soffs):
            SO[s] = f"s{90+n}"
    for s in soffs:
        a(f"s_mov_b32 {SO[s]}, {s:#x}")
    a("s_lshl_b32 s3, s22, 23")
    a("s_lshl_b32 s40, s23, 18")
    a("s_add_u32 s3, s3, s40")
    a("s_lshl_b32 s41, s22, 11")
    a("s_mov_b32 s26, 0x40000")
    a("s_mov_b32 s27, 0x20000")
    a("s_mov_b32 s30, 0x40000")
    a("s_mov_b32 s31, 0x20000")
    a("s_mov_b32 s34, 0x4000")
    a("s_mov_b32 s35, 0x20000")
    a("s_waitcnt lgkmcnt(0)")
    stamp(a, o, 1)
    a("s_add_u32 s24, s6, s3")
    a("s_addc_u32 s25, s7, 0")
    a("s_mov_b32 s32, s4")
    a("s_mov_b32 s33, s5")
    a(f"buffer_load_dwordx4 {vr(Q0,4)}, v{MX+2}, s[32:35], s41 offen")
    a(f"buffer_load_dwordx4 {vr(Q0+4,4)}, v{MX+2}, s[32:35], s41 offen offset:32")
    for i in range(32):
        so, im = ld_off(i)
        a(f"buffer_load_dwordx4 {vr(D0+4*i,4)}, v{VK}, s[24:27], {SO[so]} offen offset:{im} {nt}")
    stamp(a, o, 2)
    a("s_add_u32 s28, s8, s3")
    a("s_addc_u32 s29, s9, 0")
    srd(a, 36, 20, WS_BYTES)
    a("s_mov_b32 s42, 0x05040100")
    a("s_mov_b32 s43, 0x07060302")
    a(f"s_mov_b32 s68, {C_SC:#x}")
    for r in range(4):
        a(f"v_mov_b32 v{ONE+r}, 0x3f803f80")
    a(f"v_and_b32 v{MX+1}, 15, v0")
    a(f"v_lshrrev_b32 v{MX+3}, 6, v0")
    a(f"v_lshlrev_b32 v{MX+4}, 5, v{MX+1}")
    a(f"v_add_u32 v{MX+4}, 0x8000, v{MX+4}")
    a(f"v_lshl_add_u32 v{MX+5}, v{MX+3}, 2, v{MX+4}")
    a(f"v_and_b32 v{MX+6}, 7, v0")
    a(f"v_mul_u32_u24 v{MX+6}, 528, v{MX+6}")
    a(f"v_lshl_add_u32 v{MX+6}, v{MX+3}, 12, v{MX+6}")
    a(f"v_bfe_u32 v{MX+7}, v0, 4, 2")
    a(f"v_lshl_add_u32 v{MX+6}, v{MX+7}, 7, v{MX+6}")
    T0 = W0
    for b in range(8):
        a("s_waitcnt vmcnt(28)")
        if b == 0:
            stamp(a, o, 3)
        for k in range(4):
            i = 4 * b + k
            a(f"v_mfma_f32_16x16x32_bf16 {vr(T0+6*k+2,4)}, {vr(D0+4*i,4)}, {vr(Q0,4)}, 0")
        a("s_nop 2")
        for k in range(4):
            i = 4 * b + k
            a(f"v_mfma_f32_16x16x32_bf16 {vr(T0+6*k,4)}, {vr(D0+4*i,4)}, {vr(Q0+4,4)}, {vr(T0+6*k,4)}")
        for k in range(4):
            i = 4 * b + k
            so, im = ld_off(i)
            a(f"buffer_load_dwordx4 {vr(D0+4*i,4)}, v{VV}, s[28:31], {SO[so]} offen offset:{im} {nt}")
        a("s_nop 0")
        for k in range(4):
            i = 4 * b + k
            if k > 0:
                pass
            a(f"v_add_f32_dpp v{S0+i}, v{T0+6*k+3}, v{T0+6*k+2} row_ror:8 row_mask:0xf bank_mask:0xf")
    stamp(a, o, 4)
    M = MX + 8
    a(f"v_max3_f32 v{M}, v{S0}, v{S0+1}, v{S0+2}")
    for i in range(3, 31, 2):
        a(f"v_max3_f32 v{M}, v{S0+i}, v{S0+i+1}, v{M}")
    a(f"v_max_f32 v{M}, v{S0+31}, v{M}")
    a("s_nop 1")
    xlane_sum_all(a, [M], MX + 9, [16, 32], op="v_max_f32")
    a(f"ds_write_b32 v{MX+5}, v{M}")
    a("s_waitcnt lgkmcnt(0)")
    a("s_barrier")
    a(f"ds_read_b128 {vr(W0,4)}, v{MX+4}")
    a(f"ds_read_b128 {vr(W0+4,4)}, v{MX+4} offset:16")
    a("s_waitcnt lgkmcnt(0)")
    a(f"v_max3_f32 v{M}, v{W0}, v{W0+1}, v{W0+2}")
    a(f"v_max3_f32 v{M}, v{W0+3}, v{W0+4}, v{M}")
    a(f"v_max3_f32 v{M}, v{W0+5}, v{W0+6}, v{M}")
    a(f"v_max_f32 v{M}, v{W0+7}, v{M}")
    a(f"v_mul_f32 v{M}, s68, v{M}")
    for i in range(32):
        a(f"v_fma_f32 v{S0+i}, v{S0+i}, s68, -v{M}")
    for i in range(32):
        a(f"v_exp_f32 v{S0+i}, v{S0+i}")
    a("s_nop 0")
    for k in range(16):
        a(f"v_cvt_pk_bf16_f32 v{S0+k}, v{S0+2*k}, v{S0+2*k+1}")
    stamp(a, o, 5)
    for t in range(4):
        a(f"s_waitcnt vmcnt({24 - 8*t})")
        P = S0 + 4 * t
        for u in range(4):
            for half in range(2):
                j = 2 * u + half
                for m in range(4):
                    va = D0 + 4 * (8 * t + 2 * m) + u
                    vb = D0 + 4 * (8 * t + 2 * m + 1) + u
                    a(f"v_perm_b32 v{W0+4*j+m}, v{vb}, v{va}, s{42+half}")
            if u >= 1:
                for j in (2 * u - 2, 2 * u - 1):
                    c = "0" if t == 0 else vr(O0 + 4 * j, 4)
                    a(f"v_mfma_f32_16x16x32_bf16 {vr(O0+4*j,4)}, {vr(W0+4*j,4)}, {vr(P,4)}, {c}")
        c = "0" if t == 0 else vr(L0, 4)
        a(f"v_mfma_f32_16x16x32_bf16 {vr(L0,4)}, {vr(ONE,4)}, {vr(P,4)}, {c}")
        a("s_nop 0")
        for j in (6, 7):
            c = "0" if t == 0 else vr(O0 + 4 * j, 4)
            a(f"v_mfma_f32_16x16x32_bf16 {vr(O0+4*j,4)}, {vr(W0+4*j,4)}, {vr(P,4)}, {c}")
    stamp(a, o, 6)
    for j in range(1, 8):
        a(f"v_xor_b32 v{W0+j}, {j<<4}, v{MX+6}")
    a(f"v_mov_b32 v{W0}, v{MX+6}")
    a(f"ds_write_b32 v{MX+5}, v{L0} offset:512")
    a("s_mov_b32 s44, 0x00ff00ff")
    a("s_mov_b32 s45, 0x00ff00ff")
    a("s_mov_b64 exec, s[44:45]")
    for j in range(8):
        a(f"ds_write_b128 v{W0+j}, {vr(O0+4*j,4)}")
    a("s_mov_b64 exec, -1")
    a(f"v_lshlrev_b32 v{MX+7}, 4, v0")
    a(f"v_lshrrev_b32 v{TMP}, 3, v0")
    a(f"v_lshlrev_b32 v{TMP}, 12, v{TMP}")
    a(f"v_and_b32 v{VK}, 7, v0")
    a(f"v_lshl_add_u32 v{TMP}, v{VK}, 4, v{TMP}")
    a("s_lshl_b32 s46, s22, 17")
    a("s_lshl_b32 s47, s23, 7")
    a("s_add_u32 s46, s46, s47")
    a(f"v_readfirstlane_b32 s47, v{MX+3}")
    a("s_waitcnt lgkmcnt(0)")
    a("s_barrier")
    a("s_cmp_lt_u32 s47, 4")
    a("s_cbranch_scc0 L_not_ored")
    for w in range(8):
        a(f"ds_read_b128 {vr(D0+4*w,4)}, v{MX+7} offset:{4096*w}")
    for w in range(1, 8):
        a(f"s_waitcnt lgkmcnt({7-w})")
        for r in range(4):
            a(f"v_add_f32 v{D0+r}, v{D0+r}, v{D0+4*w+r}")
    a(f"buffer_store_dwordx4 {vr(D0,4)}, v{TMP}, s[36:39], s46 offen {sc}")
    a("s_branch L_main_pub_done")
    a("L_not_ored:")
    a("s_cmp_eq_u32 s47, 4")
    a("s_cbranch_scc0 L_main_pub_done")
    a(f"ds_read_b128 {vr(D0,4)}, v{MX+4} offset:512")
    a(f"ds_read_b128 {vr(D0+4,4)}, v{MX+4} offset:528")
    a(f"v_and_b32 v{VK}, 7, v0")
    a(f"v_lshlrev_b32 v{VK}, 8, v{VK}")
    a("s_lshl_b32 s46, s22, 11")
    a("s_lshl_b32 s47, s23, 3")
    a("s_add_u32 s46, s46, s47")
    a(f"s_add_u32 s46, s46, {ML_OFF:#x}")
    a("s_waitcnt lgkmcnt(0)")
    a(f"v_add_f32 v{D0+1}, v{D0}, v{D0+1}")
    a(f"v_add_f32 v{D0+2}, v{D0+2}, v{D0+3}")
    a(f"v_add_f32 v{D0+4}, v{D0+4}, v{D0+5}")
    a(f"v_add_f32 v{D0+6}, v{D0+6}, v{D0+7}")
    a(f"v_add_f32 v{D0+1}, v{D0+1}, v{D0+2}")
    a(f"v_add_f32 v{D0+4}, v{D0+4}, v{D0+6}")
    a(f"v_add_f32 v{D0+1}, v{D0+1}, v{D0+4}")
    a(f"v_mov_b32 v{D0}, v{M}")
    a("s_mov_b64 exec, 0xff")
    a(f"buffer_store_dwordx2 {vr(D0,2)}, v{VK}, s[36:39], s46 offen {sc}")
    a("s_mov_b64 exec, -1")
    a("L_main_pub_done:")
    if o["stamp"]:
        stamp(a, o, 7)
        dump_stamps(a, o, 8, MX + 3)
    if o["spin"]:
        a("L_spin:")
        a("s_memrealtime s[88:89]")
        a("s_waitcnt lgkmcnt(0)")
        a("s_sub_u32 s88, s88, s86")
        a(f"s_cmp_lt_u32 s88, {o['spin']}")
        a("s_cbranch_scc1 L_spin")
    a("L_main_end:")
    a("s_endpgm")


def comb_kernel(a, o, label):
    R = dict(lane=0, t0=1, t1=2, q2=3, k2=4, mk=5, st=6, ox=7, om=8, M=9, L=10,
             vt=12, X=16, ML=32, F=40, O=48, T=52)
    a(f".p2align 8")
    a(f".type {label},@function")
    a(f"{label}:")
    a("s_cmp_ge_u32 s2, 256")
    a("s_cbranch_scc1 L_comb_end")
    a("s_load_dwordx16 s[4:19], s[0:1], 0")
    a("s_load_dwordx2 s[20:21], s[0:1], 64")
    ids(a, o)
    a("s_lshr_b32 s40, s23, 2")
    a("s_and_b32 s41, s23, 3")
    combine_addr(a, o, 22, 23, 40, R)
    a("s_waitcnt lgkmcnt(0)")
    srd(a, 36, 20, WS_BYTES)
    combine_loads(a, o, 22, 23, 40, R, "")
    srd(a, 32, 4, 0x4000)
    srd(a, 48, 10, 2048)
    srd(a, 52, 12, 2052)
    srd(a, 56, 14, 4)
    srd(a, 44, 16, 0x4000)
    tree_part(a, o, 22, 40, 41, R)
    a("s_waitcnt vmcnt(0)")
    tree_score(a, o, R)
    combine_math(a, o, 22, 40, 41, R)
    a("L_comb_end:")
    a("s_endpgm")


def kd(a, label, vgpr, sgpr=102):
    a(f".amdhsa_kernel {label}")
    a.lines.append(f"  .amdhsa_next_free_vgpr {vgpr}")
    a.lines.append(f"  .amdhsa_next_free_sgpr {sgpr}")
    a.lines.append(f"  .amdhsa_accum_offset {(vgpr+3)//4*4}")
    a.lines.append("  .amdhsa_group_segment_fixed_size 0")
    a.lines.append("  .amdhsa_kernarg_size 72")
    a.lines.append("  .amdhsa_user_sgpr_count 2")
    a.lines.append("  .amdhsa_user_sgpr_kernarg_segment_ptr 1")
    a.lines.append("  .amdhsa_system_sgpr_workgroup_id_x 1")
    a.lines.append("  .amdhsa_float_denorm_mode_32 3")
    a(".end_amdhsa_kernel")


def gen(o):
    a = Asm()
    LDS = 32768 + 1024
    main = NAME + "_kernel"
    hdr = HEADER
    if o["mode"] == "two":
        hdr += f"; @launch kernel={main} grid=(256,1,1) block=(512,1,1) lds={LDS}\n"
        hdr += f"; @launch kernel=combine_kernel grid=(256,1,1) block=(64,1,1) lds=0\n"
    else:
        hdr += f"; @launch grid=(256,1,1) block=(512,1,1) lds={LDS}\n"
    a.lines.append(hdr.rstrip())
    a('.amdgcn_target "amdgcn-amd-amdhsa--gfx950"')
    a(".text")
    a(f".globl {main}")
    main_kernel(a, o, main)
    if o["mode"] == "two":
        a(".globl combine_kernel")
        comb_kernel(a, o, "combine_kernel")
    a('.section .rodata,"a"')
    a(".p2align 6")
    kd(a, main, 256)
    if o["mode"] == "two":
        a(".p2align 6")
        kd(a, "combine_kernel", 64)
    return a.text()


if __name__ == "__main__":
    o = dict(mode="two", nt="", map=0, ilv=0, stamp=0, spin=0)
    for kv in sys.argv[2:]:
        k, v = kv.split("=")
        o[k] = int(v) if v.lstrip("-").isdigit() else v
    open(sys.argv[1], "w").write(gen(o))
```

```python
import sys
from gen import *

NW = 4
TILES = 8


def st(a, o, idx):
    if o["stamp"] or o["amp"]:
        a(f"s_memrealtime s[{70+2*idx}:{71+2*idx}]")


def kernel(a, o, label):
    nt = o["nt"]
    TID, VK, VV, TMP = 0, 1, 2, 3
    LANE, WAVE, MROW, MWR, OADR, MRUN, ALPHA, MC = 4, 5, 6, 7, 8, 9, 10, 11
    X0, X1, CNT, STA = 12, 13, 14, 15
    KB = [16, 48]
    VB = [80, 112]
    W0 = 144
    S0 = 192
    P0 = 200
    O0 = 204
    L0 = 236
    Q0 = 240
    ONE = 248
    R = dict(lane=LANE, t0=X0, t1=X1, vt=252)
    R.update(q2=TMP, k2=STA, mk=CNT, st=OADR)

    a(".p2align 8")
    a(f".type {label},@function")
    a(f"{label}:")
    a("s_cmp_ge_u32 s2, 256")
    a("s_cbranch_scc1 L_end")
    a("s_load_dwordx16 s[4:19], s[0:1], 0")
    a("s_load_dwordx2 s[20:21], s[0:1], 64")
    st(a, o, 0)
    a(f"v_lshrrev_b32 v{WAVE}, 6, v0")
    a(f"v_and_b32 v{LANE}, 63, v0")
    ids(a, o)
    a(f"v_readfirstlane_b32 s69, v{WAVE}")
    a(f"v_lshlrev_b32 v{VV}, 4, v{LANE}")
    a(f"v_bfe_u32 v{X0}, v0, 2, 2")
    a(f"v_lshlrev_b32 v{VK}, 8, v{X0}")
    a(f"v_bfe_u32 v{X0}, v0, 4, 2")
    a(f"v_lshl_add_u32 v{VK}, v{X0}, 6, v{VK}")
    a(f"v_and_b32 v{X1}, 3, v0")
    a(f"v_lshl_add_u32 v{VK}, v{X1}, 4, v{VK}")
    a(f"v_and_b32 v{X1}, 7, v0")
    a(f"v_lshlrev_b32 v{X1}, 8, v{X1}")
    a(f"v_lshl_add_u32 v{X1}, v{X0}, 6, v{X1}")
    a(f"v_bfe_u32 v{X0}, v0, 3, 1")
    a(f"v_lshl_add_u32 v{X1}, v{X0}, 4, v{X1}")
    a("s_lshl_b32 s3, s22, 23")
    a("s_lshl_b32 s40, s23, 18")
    a("s_add_u32 s3, s3, s40")
    a("s_lshl_b32 s40, s69, 16")
    a("s_add_u32 s3, s3, s40")
    a("s_lshl_b32 s41, s22, 11")
    a("s_mov_b32 s26, 0x10000")
    a("s_mov_b32 s27, 0x20000")
    a("s_mov_b32 s30, 0x10000")
    a("s_mov_b32 s31, 0x20000")
    a("s_mov_b32 s34, 0x4000")
    a("s_mov_b32 s35, 0x20000")
    a("s_movk_i32 s90, 0x1000")
    a("s_movk_i32 s91, 0x2000")
    a("s_movk_i32 s92, 0x3000")
    a("s_waitcnt lgkmcnt(0)")
    st(a, o, 1)
    a("s_add_u32 s24, s6, s3")
    a("s_addc_u32 s25, s7, 0")
    a("s_add_u32 s28, s8, s3")
    a("s_addc_u32 s29, s9, 0")
    a("s_mov_b32 s32, s4")
    a("s_mov_b32 s33, s5")

    def loads(buf, voff, srdb, so0, so1):
        for i in range(8):
            so = so0 if i < 4 else so1
            a(f"buffer_load_dwordx4 {vr(buf+4*i,4)}, v{voff}, s[{srdb}:{srdb+3}], {so} offen offset:{(i&3)*1024} {nt}")

    loads(KB[0], VK, 24, "0", "s90")
    a(f"buffer_load_dwordx4 {vr(Q0,4)}, v{X1}, s[32:35], s41 offen")
    a(f"buffer_load_dwordx4 {vr(Q0+4,4)}, v{X1}, s[32:35], s41 offen offset:32")
    loads(VB[0], VV, 28, "0", "s90")
    loads(KB[1], VK, 24, "s91", "s92")
    loads(VB[1], VV, 28, "s91", "s92")
    st(a, o, 2)
    srd(a, 36, 20, WS_BYTES)
    srd(a, 48, 10, 2048)
    srd(a, 52, 12, 2052)
    srd(a, 56, 14, 4)
    srd(a, 44, 16, 0x4000)
    a("s_mov_b32 s96, s18")
    a("s_and_b32 s97, s19, 0xffff")
    a("s_movk_i32 s98, 0x100")
    a("s_mov_b32 s99, 0x20000")
    a("s_lshl_b32 s100, s22, 5")
    a("s_lshr_b32 s40, s23, 2")
    a("s_and_b32 s41, s23, 3")
    a("s_cmp_eq_u32 s69, 0")
    a("s_cbranch_scc0 L_noclear")
    a(f"v_lshrrev_b32 v{X0}, 3, v{LANE}")
    a(f"v_lshlrev_b32 v{X0}, 12, v{X0}")
    a(f"v_and_b32 v{X1}, 7, v{LANE}")
    a(f"v_lshl_add_u32 v{X0}, v{X1}, 4, v{X0}")
    for r in range(4):
        a(f"v_mov_b32 v{W0+r}, -1")
    a("s_lshl_b32 s94, s22, 17")
    a("s_lshl_b32 s95, s23, 7")
    a("s_add_u32 s94, s94, s95")
    for w in range(4):
        a(f"buffer_store_dwordx4 {vr(W0,4)}, v{X0}, s[36:39], s94 offen sc1")
        if w < 3:
            a("s_add_u32 s94, s94, 0x8000")
    a(f"v_lshlrev_b32 v{X1}, 8, v{X1}")
    a("s_lshl_b32 s94, s22, 11")
    a("s_lshl_b32 s95, s23, 3")
    a("s_add_u32 s94, s94, s95")
    a(f"s_add_u32 s94, s94, {ML_OFF:#x}")
    a("s_mov_b64 exec, 0xff")
    a(f"buffer_store_dwordx2 {vr(W0,2)}, v{X1}, s[36:39], s94 offen sc1")
    a("s_mov_b64 exec, -1")
    tree_part(a, o, 22, 40, 41, R)
    a("L_noclear:")
    a("s_mov_b32 s42, 0x05040100")
    a("s_mov_b32 s43, 0x07060302")
    a(f"s_mov_b32 s68, {C_SC:#x}")
    for r in range(4):
        a(f"v_mov_b32 v{ONE+r}, 0x3f803f80")
    for r in range(36):
        a(f"v_mov_b32 v{O0+r}, 0")
    a(f"v_mov_b32 v{MRUN}, 0xff800000")
    a(f"v_and_b32 v{X0}, 15, v0")
    a(f"v_lshlrev_b32 v{MWR}, 4, v{X0}")
    a(f"v_lshl_add_u32 v{MWR}, v{WAVE}, 2, v{MWR}")
    a(f"v_add_u32 v{MWR}, 0x4000, v{MWR}")
    a(f"v_lshrrev_b32 v{MROW}, 5, v0")
    a(f"v_lshlrev_b32 v{MROW}, 4, v{MROW}")
    a(f"v_add_u32 v{MROW}, 0x4000, v{MROW}")
    a("s_mov_b32 s93, 0")
    a("s_movk_i32 s90, 0x4000")
    a("s_movk_i32 s91, 0x5000")
    if o["align"]:
        a(f".p2align {o['align']}")
    a("L_loop:")
    for x in range(2):
        K, V = KB[x], VB[x]
        a("s_waitcnt vmcnt(24)")
        if x == 0:
            a("s_cmp_eq_u32 s69, 0")
            a("s_cbranch_scc0 L_noside")
            a("s_cmp_eq_u32 s93, 1")
            a("s_cbranch_scc0 L_side2")
            a(f"v_mov_b32 v{X0}, 1")
            a(f"v_mov_b32 v{X1}, 0")
            a("s_mov_b64 exec, 1")
            a(f"buffer_atomic_add v{X0}, v{X1}, s[96:99], s100 offen sc1")
            a("s_mov_b64 exec, -1")
            tree_score(a, o, R)
            a("s_branch L_noside")
            a("L_side2:")
            a("s_cmp_eq_u32 s93, 3")
            a("s_cbranch_scc0 L_noside")
            a(f"v_mov_b32 v{X1}, 0")
            a(f"buffer_load_dword v{CNT}, v{X1}, s[96:99], s100 offen sc1")
            a("L_noside:")
        for i in range(8):
            a(f"v_mfma_f32_16x16x32_bf16 {vr(W0+6*i+2,4)}, {vr(K+4*i,4)}, {vr(Q0,4)}, 0")
        for i in range(8):
            a(f"v_mfma_f32_16x16x32_bf16 {vr(W0+6*i,4)}, {vr(K+4*i,4)}, {vr(Q0+4,4)}, {vr(W0+6*i,4)}")
        loads(K, VK, 24, "s90", "s91")
        for i in range(8):
            a(f"v_add_f32_dpp v{S0+i}, v{W0+6*i+3}, v{W0+6*i+2} row_ror:8 row_mask:0xf bank_mask:0xf")
        a(f"v_max3_f32 v{X0}, v{S0}, v{S0+1}, v{MRUN}")
        a(f"v_max3_f32 v{X0}, v{S0+2}, v{S0+3}, v{X0}")
        a(f"v_max3_f32 v{X0}, v{S0+4}, v{S0+5}, v{X0}")
        a(f"v_max3_f32 v{X0}, v{S0+6}, v{S0+7}, v{X0}")
        xlane_sum_all(a, [X0], X1, [16, 32], op="v_max_f32")
        a(f"v_sub_f32 v{ALPHA}, v{MRUN}, v{X0}")
        a(f"v_mul_f32 v{MC}, s68, v{X0}")
        a(f"v_mul_f32 v{ALPHA}, s68, v{ALPHA}")
        a(f"v_mov_b32 v{MRUN}, v{X0}")
        a(f"v_exp_f32 v{ALPHA}, v{ALPHA}")
        for i in range(8):
            a(f"v_fma_f32 v{S0+i}, v{S0+i}, s68, -v{MC}")
        for i in range(8):
            a(f"v_exp_f32 v{S0+i}, v{S0+i}")
        for r in range(33):
            a(f"v_mul_f32 v{O0+r}, v{ALPHA}, v{O0+r}")
        for k in range(4):
            a(f"v_cvt_pk_bf16_f32 v{P0+k}, v{S0+2*k}, v{S0+2*k+1}")
        for m in range(4):
            a(f"s_waitcnt vmcnt({30-2*m})")
            for u in range(4):
                for half in range(2):
                    j = 2 * u + half
                    a(f"v_perm_b32 v{W0+4*j+m}, v{V+4*(2*m+1)+u}, v{V+4*(2*m)+u}, s{42+half}")
            if m == 0:
                a(f"v_mfma_f32_16x16x32_bf16 {vr(L0,4)}, {vr(ONE,4)}, {vr(P0,4)}, {vr(L0,4)}")
        for j in range(8):
            a(f"v_mfma_f32_16x16x32_bf16 {vr(O0+4*j,4)}, {vr(W0+4*j,4)}, {vr(P0,4)}, {vr(O0+4*j,4)}")
        loads(V, VV, 28, "s90", "s91")
        a("s_add_u32 s90, s90, 0x2000")
        a("s_add_u32 s91, s91, 0x2000")
    a("s_add_u32 s93, s93, 1")
    a(f"s_cmp_lt_u32 s93, {TILES//2}")
    a("s_cbranch_scc1 L_loop")
    st(a, o, 3)
    a(f"v_mov_b32 v{ALPHA}, v{OADR}")
    R["st"] = ALPHA
    a(f"v_and_b32 v{OADR}, 7, v0")
    a(f"v_mul_u32_u24 v{OADR}, 528, v{OADR}")
    a(f"v_lshl_add_u32 v{OADR}, v{WAVE}, 12, v{OADR}")
    a(f"v_bfe_u32 v{X0}, v0, 4, 2")
    a(f"v_lshl_add_u32 v{OADR}, v{X0}, 7, v{OADR}")
    for j in range(1, 8):
        a(f"v_xor_b32 v{S0+j}, {j<<4}, v{OADR}")
    a(f"ds_write_b32 v{MWR}, v{MC}")
    a(f"ds_write_b32 v{MWR}, v{L0} offset:256")
    a("s_mov_b32 s94, 0x00ff00ff")
    a("s_mov_b32 s95, 0x00ff00ff")
    a("s_mov_b64 exec, s[94:95]")
    for j in range(8):
        a(f"ds_write_b128 v{OADR if j == 0 else S0+j}, {vr(O0+4*j,4)}")
    a("s_mov_b64 exec, -1")
    a(f"v_lshlrev_b32 v{X1}, 4, v0")
    a(f"v_lshrrev_b32 v{STA}, 3, v0")
    a(f"v_lshlrev_b32 v{STA}, 12, v{STA}")
    a(f"v_and_b32 v{X0}, 7, v0")
    a(f"v_lshl_add_u32 v{STA}, v{X0}, 4, v{STA}")
    a(f"v_lshrrev_b32 v{TMP}, 5, v0")
    a(f"v_lshlrev_b32 v{TMP}, 8, v{TMP}")
    a("s_lshl_b32 s94, s22, 17")
    a("s_lshl_b32 s95, s23, 7")
    a("s_add_u32 s94, s94, s95")
    a("s_lshl_b32 s60, s22, 11")
    a("s_lshl_b32 s95, s23, 3")
    a("s_add_u32 s60, s60, s95")
    a(f"s_add_u32 s60, s60, {ML_OFF:#x}")
    a("s_mov_b32 s61, 0xfffffffe")
    a("s_waitcnt lgkmcnt(0)")
    a("s_barrier")
    st(a, o, 4)
    MR, LR, OR, F = W0, W0 + 4, W0 + 8, W0 + 24
    a(f"ds_read_b128 {vr(MR,4)}, v{MROW}")
    for w in range(4):
        a(f"ds_read_b128 {vr(OR+4*w,4)}, v{X1} offset:{4096*w}")
    a(f"ds_read_b128 {vr(LR,4)}, v{MROW} offset:256")
    a("s_waitcnt lgkmcnt(5)" if not (o["stamp"] or o["amp"]) else "s_waitcnt lgkmcnt(0)")
    a(f"v_max3_f32 v{F+4}, v{MR}, v{MR+1}, v{MR+2}")
    a(f"v_max_f32 v{F+4}, v{F+4}, v{MR+3}")
    for w in range(4):
        a(f"v_sub_f32 v{F+w}, v{MR+w}, v{F+4}")
    for w in range(4):
        a(f"v_exp_f32 v{F+w}, v{F+w}")
    a("s_waitcnt lgkmcnt(0)")
    for r in range(4):
        a(f"v_mul_f32 v{OR+r}, v{F}, v{OR+r}")
    for w in range(1, 4):
        for r in range(4):
            a(f"v_fmac_f32 v{OR+r}, v{F+w}, v{OR+4*w+r}")
    for r in range(4):
        a(f"v_min_u32 v{OR+r}, s61, v{OR+r}")
    a(f"buffer_store_dwordx4 {vr(OR,4)}, v{STA}, s[36:39], s94 offen sc1")
    a(f"v_mul_f32 v{F+5}, v{F}, v{LR}")
    for w in range(1, 4):
        a(f"v_fmac_f32 v{F+5}, v{F+w}, v{LR+w}")
    a(f"v_min_u32 v{F+4}, s61, v{F+4}")
    a(f"v_min_u32 v{F+5}, s61, v{F+5}")
    a("s_mov_b32 s94, 1")
    a("s_mov_b32 s95, 1")
    a("s_mov_b64 exec, s[94:95]")
    a(f"buffer_store_dwordx2 {vr(F+4,2)}, v{TMP}, s[36:39], s60 offen sc1")
    a("s_mov_b64 exec, -1")
    st(a, o, 5)
    a("s_cmp_eq_u32 s69, 0")
    a("s_cbranch_scc0 L_fin")
    R.update(ox=VK, om=VV, X=O0, ML=O0 + 16, F=O0 + 24, O=W0 + 32, T=W0 + 36, M=W0 + 42, L=W0 + 43)
    combine_addr(a, o, 22, 23, 40, R)
    a(f"v_readfirstlane_b32 s94, v{CNT}")
    a("s_nop 2")
    a(f"s_mov_b32 s101, {o['maxspin']}")
    a("s_cmp_eq_u32 s94, 32")
    a("s_cbranch_scc1 L_poll")
    a("L_cntspin:")
    a("s_sub_u32 s101, s101, 1")
    a("s_cbranch_scc1 L_fin")
    a(f"v_mov_b32 v{X1}, 0")
    a(f"buffer_load_dword v{CNT}, v{X1}, s[96:99], s100 offen sc1")
    a("s_waitcnt vmcnt(0)")
    a(f"v_readfirstlane_b32 s94, v{CNT}")
    a("s_nop 2")
    a("s_cmp_eq_u32 s94, 32")
    a("s_cbranch_scc0 L_cntspin")
    a("L_poll:")
    a("s_sub_u32 s101, s101, 1")
    a("s_cbranch_scc1 L_fin")
    combine_loads(a, o, 22, 23, 40, R, "sc1")
    a("s_waitcnt vmcnt(0)")
    X = R["X"]
    a(f"v_max3_u32 v{X0}, v{X}, v{X+1}, v{X+2}")
    a(f"v_max3_u32 v{X1}, v{X+3}, v{X+4}, v{X+5}")
    for i in range(6, 22, 4):
        a(f"v_max3_u32 v{X0}, v{X+i}, v{X+i+1}, v{X0}")
        a(f"v_max3_u32 v{X1}, v{X+i+2}, v{X+i+3}, v{X1}")
    a(f"v_max3_u32 v{X0}, v{X+22}, v{X+23}, v{X0}")
    a(f"v_max_u32 v{X0}, v{X0}, v{X1}")
    a(f"v_cmp_eq_u32 vcc, -1, v{X0}")
    a("s_cbranch_vccnz L_poll")
    st(a, o, 6)
    combine_math(a, o, 22, 40, 41, R)
    a("L_fin:")
    if o["stamp"]:
        a("s_cmp_eq_u32 s69, 0")
        a("s_cbranch_scc1 L_have6")
        st(a, o, 6)
        a("L_have6:")
        st(a, o, 7)
        dump_stamps(a, o, 8, WAVE, nwaves=NW)
    if o["amp"]:
        st(a, o, 7)
        a("s_waitcnt lgkmcnt(0)")
        j = o["amp"]
        a(f"s_sub_u32 s60, s{70+2*j}, s70")
        a(f"s_mul_i32 s60, s60, {o['mult']}")
        a(f"s_add_u32 s60, s60, {o['base']}")
        if j == 6:
            a("s_cmp_eq_u32 s69, 0")
            a("s_cbranch_scc0 L_end")
        a("L_spin:")
        a("s_memrealtime s[88:89]")
        a("s_waitcnt lgkmcnt(0)")
        a("s_sub_u32 s88, s88, s70")
        a("s_cmp_lt_u32 s88, s60")
        a("s_cbranch_scc1 L_spin")
    a("L_end:")
    a("s_endpgm")


def gen2(o):
    a = Asm()
    main = NAME + "_kernel"
    a.lines.append((HEADER + f"; @launch grid=(256,1,1) block=(256,1,1) lds={o['lds']}\n").rstrip())
    a('.amdgcn_target "amdgcn-amd-amdhsa--gfx950"')
    a(".text")
    a(f".globl {main}")
    kernel(a, o, main)
    a('.section .rodata,"a"')
    a(".p2align 6")
    kd(a, main, 256)
    return a.text()


if __name__ == "__main__":
    o = dict(nt="nt", map=0, stamp=0, amp=0, mult=0, base=6000, lds=98304, align=0, maxspin=20000)
    for kv in sys.argv[2:]:
        k, v = kv.split("=")
        o[k] = int(v) if v.lstrip("-").isdigit() else v
    open(sys.argv[1], "w").write(gen2(o))
```

```python
import sys
from gen import *

NW = 5
PO2_OFF = WS_BYTES
WS4_BYTES = WS_BYTES + PO_BYTES


def st(a, o, idx):
    if o["stamp"] or o["amp"]:
        a(f"s_memrealtime s[{70+2*idx}:{71+2*idx}]")


def sent_check(a, X, n, t0, t1):
    regs = list(range(X, X + n))
    acc = [None, None]
    tmp = [t0, t1]
    i = 0
    side = 0
    while i < n:
        if acc[side] is None:
            take = regs[i:i + 3]
            i += 3
            a(f"v_max3_u32 v{tmp[side]}, " + ", ".join(f"v{r}" for r in take))
            acc[side] = 1
        elif n - i >= 2:
            a(f"v_max3_u32 v{tmp[side]}, v{regs[i]}, v{regs[i+1]}, v{tmp[side]}")
            i += 2
        else:
            a(f"v_max_u32 v{tmp[side]}, v{regs[i]}, v{tmp[side]}")
            i += 1
        side ^= 1
    a(f"v_max_u32 v{t0}, v{t0}, v{t1}")
    a(f"v_cmp_eq_u32 vcc, -1, v{t0}")


def kernel(a, o, label):
    nt = o["nt"]
    NB = o["nb"]
    dual = o["dual"]
    VK, VV, OADR, M, X0, X1, MROW, MWR, STA, WAVE, LANE = range(1, 12)
    Q0 = 16
    ONE = 16
    RING = 24
    S0 = 152
    W0 = S0 + 32
    T0 = 216
    O0, L0 = 216, 248

    a(".p2align 8")
    a(f".type {label},@function")
    a(f"{label}:")
    a("s_cmp_ge_u32 s2, 256")
    a("s_cbranch_scc1 L_end")
    a("s_load_dwordx16 s[4:19], s[0:1], 0")
    a("s_load_dwordx2 s[20:21], s[0:1], 64")
    st(a, o, 0)
    a(f"v_lshrrev_b32 v{WAVE}, 6, v0")
    a(f"v_and_b32 v{LANE}, 63, v0")
    ids(a, o)
    a(f"v_readfirstlane_b32 s69, v{WAVE}")
    a(f"v_lshlrev_b32 v{VV}, 4, v{LANE}")
    a(f"v_lshl_add_u32 v{VV}, v{WAVE}, 13, v{VV}")
    a(f"v_bfe_u32 v{X0}, v0, 2, 2")
    a(f"v_lshlrev_b32 v{VK}, 8, v{X0}")
    a(f"v_lshl_add_u32 v{VK}, v{WAVE}, 13, v{VK}")
    a(f"v_bfe_u32 v{X0}, v0, 4, 2")
    a(f"v_lshl_add_u32 v{VK}, v{X0}, 6, v{VK}")
    a(f"v_and_b32 v{X1}, 3, v0")
    a(f"v_lshl_add_u32 v{VK}, v{X1}, 4, v{VK}")
    a(f"v_and_b32 v{X1}, 7, v0")
    a(f"v_lshlrev_b32 v{X1}, 8, v{X1}")
    a(f"v_lshl_add_u32 v{X1}, v{X0}, 6, v{X1}")
    a(f"v_bfe_u32 v{X0}, v0, 3, 1")
    a(f"v_lshl_add_u32 v{X1}, v{X0}, 4, v{X1}")
    a("s_lshl_b32 s3, s22, 23")
    a("s_lshl_b32 s40, s23, 18")
    a("s_add_u32 s3, s3, s40")
    a("s_lshl_b32 s41, s22, 11")
    a("s_mov_b32 s26, 0x40000")
    a("s_mov_b32 s27, 0x20000")
    a("s_mov_b32 s30, 0x40000")
    a("s_mov_b32 s31, 0x20000")
    a("s_mov_b32 s34, 0x4000")
    a("s_mov_b32 s35, 0x20000")
    a("s_movk_i32 s91, 0x1000")
    a("s_cmp_eq_u32 s69, 4")
    a("s_waitcnt lgkmcnt(0)")
    st(a, o, 1)
    a("s_mov_b32 s32, s4")
    a("s_mov_b32 s33, s5")
    a("s_cbranch_scc1 L_helper")
    a("s_add_u32 s24, s6, s3")
    a("s_addc_u32 s25, s7, 0")

    def issue(k):
        strm, t = k >> 3, k & 7
        buf = RING + 32 * (k % NB)
        voff, sb = (VK, 24) if strm == 0 else (VV, 28)
        for i in range(8):
            if t == 0:
                so = "0" if i < 4 else "s91"
            else:
                if i % 4 == 0:
                    a(f"s_mov_b32 s90, {t*32768 + (i>>2)*4096:#x}")
                so = "s90"
            a(f"buffer_load_dwordx4 {vr(buf+4*i,4)}, v{voff}, s[{sb}:{sb+3}], {so} offen offset:{(i&3)*1024} {nt}")

    def slot_addr():
        srd(a, 36, 20, WS4_BYTES)
        a("s_lshl_b32 s92, s22, 17")
        a("s_lshl_b32 s95, s23, 7")
        a("s_add_u32 s92, s92, s95")
        a(f"v_bfe_u32 v{STA}, v0, 3, 5")
        a(f"v_lshlrev_b32 v{STA}, 12, v{STA}")
        a(f"v_and_b32 v{X0}, 7, v0")
        a(f"v_lshl_add_u32 v{STA}, v{X0}, 4, v{STA}")
        a("s_mov_b32 s101, 0xfffffffe")
        a(f"s_mov_b32 s68, {C_SC:#x}")
        a(f"v_and_b32 v{MROW}, 15, v0")
        a(f"v_lshlrev_b32 v{MROW}, 4, v{MROW}")
        a(f"v_add_u32 v{MROW}, 0x4000, v{MROW}")

    issue(0)
    a(f"buffer_load_dwordx4 {vr(Q0,4)}, v{X1}, s[32:35], s41 offen")
    a(f"buffer_load_dwordx4 {vr(Q0+4,4)}, v{X1}, s[32:35], s41 offen offset:32")
    for k in range(1, NB):
        issue(k)
    st(a, o, 2)
    a("s_add_u32 s28, s8, s3")
    a("s_addc_u32 s29, s9, 0")
    slot_addr()
    a("s_mov_b32 s42, 0x05040100")
    a("s_mov_b32 s43, 0x07060302")
    a(f"v_lshl_add_u32 v{MWR}, v{WAVE}, 2, v{MROW}")
    a(f"v_and_b32 v{OADR}, 7, v0")
    a(f"v_mul_u32_u24 v{OADR}, 528, v{OADR}")
    a(f"v_lshl_add_u32 v{OADR}, v{WAVE}, 12, v{OADR}")
    a(f"v_bfe_u32 v{X0}, v0, 4, 2")
    a(f"v_lshl_add_u32 v{OADR}, v{X0}, 7, v{OADR}")
    for k in range(8):
        K = RING + 32 * (k % NB)
        a(f"s_waitcnt vmcnt({(NB-1)*8})")
        for i in range(8):
            a(f"v_mfma_f32_16x16x32_bf16 {vr(T0+4*i+2,4)}, {vr(K+4*i,4)}, {vr(Q0,4)}, 0")
        for i in range(8):
            a(f"v_mfma_f32_16x16x32_bf16 {vr(T0+4*i,4)}, {vr(K+4*i,4)}, {vr(Q0+4,4)}, {vr(T0+4*i,4)}")
        issue(k + NB)
        for i in range(8):
            a(f"v_add_f32_dpp v{S0+8*k+i}, v{T0+4*i+3}, v{T0+4*i+2} row_ror:8 row_mask:0xf bank_mask:0xf")
        if k == 0:
            a(f"v_max3_f32 v{M}, v{S0}, v{S0+1}, v{S0+2}")
            a(f"v_max3_f32 v{M}, v{S0+3}, v{S0+4}, v{M}")
            a(f"v_max3_f32 v{M}, v{S0+5}, v{S0+6}, v{M}")
            a(f"v_max_f32 v{M}, v{S0+7}, v{M}")
        else:
            for i in range(0, 8, 2):
                a(f"v_max3_f32 v{M}, v{S0+8*k+i}, v{S0+8*k+i+1}, v{M}")
    st(a, o, 3)
    xlane_sum_all(a, [M], X0, [16, 32], op="v_max_f32")
    a(f"ds_write_b32 v{MWR}, v{M}")
    for r in range(4):
        a(f"v_mov_b32 v{ONE+r}, 0x3f803f80")
    a("s_waitcnt lgkmcnt(0)")
    a("s_barrier")
    a(f"ds_read_b128 {vr(T0,4)}, v{MROW}")
    a("s_waitcnt lgkmcnt(0)")
    a(f"v_max3_f32 v{M}, v{T0}, v{T0+1}, v{T0+2}")
    a(f"v_max_f32 v{M}, v{T0+3}, v{M}")
    a(f"v_mul_f32 v{M}, s68, v{M}")
    for t in range(8):
        for i in range(8):
            a(f"v_fma_f32 v{S0+8*t+i}, v{S0+8*t+i}, s68, -v{M}")
        for i in range(8):
            a(f"v_exp_f32 v{S0+8*t+i}, v{S0+8*t+i}")
        if t > 0:
            for k in range(4 * t - 4, 4 * t):
                a(f"v_cvt_pk_bf16_f32 v{S0+k}, v{S0+2*k}, v{S0+2*k+1}")
        if t > 1:
            c = "0" if t == 2 else vr(L0, 4)
            a(f"v_mfma_f32_16x16x32_bf16 {vr(L0,4)}, {vr(ONE,4)}, {vr(S0+4*(t-2),4)}, {c}")
    for k in range(28, 32):
        a(f"v_cvt_pk_bf16_f32 v{S0+k}, v{S0+2*k}, v{S0+2*k+1}")
    a(f"v_mfma_f32_16x16x32_bf16 {vr(L0,4)}, {vr(ONE,4)}, {vr(S0+24,4)}, {vr(L0,4)}")
    a("s_nop 0")
    a(f"v_mfma_f32_16x16x32_bf16 {vr(L0,4)}, {vr(ONE,4)}, {vr(S0+28,4)}, {vr(L0,4)}")
    a(f"v_lshlrev_b32 v{X1}, 4, v0")
    a("s_mov_b32 s94, 0x00ff00ff")
    a("s_mov_b32 s95, 0x00ff00ff")
    a("s_nop 4")
    a(f"ds_write_b32 v{MWR}, v{L0} offset:256")
    a("s_waitcnt lgkmcnt(0)")
    a("s_barrier")
    st(a, o, 4)
    for t in range(8):
        k = 8 + t
        V = RING + 32 * (k % NB)
        rem = min(15 - k, NB - 1) * 8
        for m in range(4):
            a(f"s_waitcnt vmcnt({rem + 6 - 2*m})")
            for u in range(4):
                for half in range(2):
                    j = 2 * u + half
                    a(f"v_perm_b32 v{W0+4*j+m}, v{V+4*(2*m+1)+u}, v{V+4*(2*m)+u}, s{42+half}")
        if k + NB < 16:
            issue(k + NB)
        for j in range(8):
            c = "0" if t == 0 else vr(O0 + 4 * j, 4)
            a(f"v_mfma_f32_16x16x32_bf16 {vr(O0+4*j,4)}, {vr(W0+4*j,4)}, {vr(S0+4*t,4)}, {c}")
        if t == 5:
            for j in range(1, 8):
                a(f"v_xor_b32 v{S0+j}, {j<<4}, v{OADR}")
    st(a, o, 5)
    a("s_mov_b64 exec, s[94:95]")
    a("s_nop 0")
    for j in range(8):
        a(f"ds_write_b128 v{OADR if j == 0 else S0+j}, {vr(O0+4*j,4)}")
    a("s_mov_b64 exec, -1")
    a("s_waitcnt lgkmcnt(0)")
    a("s_barrier")
    OR = RING
    for w in range(4):
        a(f"ds_read_b128 {vr(OR+4*w,4)}, v{X1} offset:{4096*w}")
    fine = not (o["stamp"] or o["amp"])
    if dual:
        a(f"s_add_u32 s93, s92, {PO2_OFF:#x}")
    a("s_waitcnt lgkmcnt(2)" if fine else "s_waitcnt lgkmcnt(0)")
    for r in range(4):
        a(f"v_add_f32 v{OR+r}, v{OR+r}, v{OR+4+r}")
    a("s_waitcnt lgkmcnt(0)")
    for r in range(4):
        a(f"v_add_f32 v{OR+8+r}, v{OR+8+r}, v{OR+12+r}")
    for r in range(4):
        a(f"v_add_f32 v{OR+r}, v{OR+r}, v{OR+8+r}")
    for r in range(4):
        a(f"v_min_u32 v{OR+r}, s101, v{OR+r}")
    if dual:
        a(f"buffer_store_dwordx4 {vr(OR,4)}, v{STA}, s[36:39], s93 offen")
    a(f"buffer_store_dwordx4 {vr(OR,4)}, v{STA}, s[36:39], s92 offen sc1")
    st(a, o, 6)
    a("s_branch L_fin")

    a("L_helper:")
    if o["prio"]:
        a(f"s_setprio {o['prio']}")
    B = RING
    R = dict(lane=LANE, t0=X0, t1=X1, q2=B, k2=B + 1, mk=B + 2, st=B + 3, vt=B + 4, ox=B + 8, om=B + 9,
             M=B + 10, L=B + 11, CNT=B + 12, OA=B + 13, X=B + 16, ML=B + 48, F=B + 56, O=B + 64, T=B + 68, Z=B + 76, OB=B + 80)
    slot_addr()
    srd(a, 48, 10, 2048)
    srd(a, 52, 12, 2052)
    srd(a, 56, 14, 4)
    srd(a, 44, 16, 0x4000)
    srd(a, 96, 18, 256)
    a("s_lshl_b32 s100, s22, 5")
    a("s_lshr_b32 s40, s23, 2")
    a("s_and_b32 s41, s23, 3")
    a("s_lshl_b32 s93, s22, 11")
    a("s_lshl_b32 s95, s23, 3")
    a("s_add_u32 s93, s93, s95")
    a(f"s_add_u32 s93, s93, {ML_OFF:#x}")
    Z = R["Z"]
    for r in range(4):
        a(f"v_mov_b32 v{Z+r}, -1")
    a("s_mov_b32 s94, s92")
    for w in range(4):
        a(f"buffer_store_dwordx4 {vr(Z,4)}, v{STA}, s[36:39], s94 offen sc1")
        if dual:
            a(f"s_add_u32 s95, s94, {PO2_OFF:#x}")
            a(f"buffer_store_dwordx4 {vr(Z,4)}, v{STA}, s[36:39], s95 offen sc1")
        if w < 3:
            a("s_add_u32 s94, s94, 0x8000")
    a(f"v_and_b32 v{OADR}, 7, v0")
    a(f"v_lshlrev_b32 v{OADR}, 8, v{OADR}")
    a("s_mov_b64 exec, 0xff")
    a(f"buffer_store_dwordx2 {vr(Z,2)}, v{OADR}, s[36:39], s93 offen sc1")
    a("s_mov_b64 exec, -1")
    tree_part(a, o, 22, 40, 41, R)
    combine_addr(a, o, 22, 23, 40, R)
    a(f"v_and_b32 v{R['OA']}, 7, v{LANE}")
    a(f"v_xor_b32 v{R['OA']}, s40, v{R['OA']}")
    a(f"v_lshlrev_b32 v{R['OA']}, 1, v{R['OA']}")
    a("s_lshl_b32 s66, s22, 3")
    a("s_add_u32 s66, s66, s40")
    a("s_lshl_b32 s66, s66, 8")
    a("s_lshl_b32 s67, s41, 6")
    a("s_add_u32 s66, s66, s67")
    a(f"v_mov_b32 v{Z+1}, 1")
    a(f"v_mov_b32 v{Z+2}, 0")
    a("s_waitcnt vmcnt(0)")
    st(a, o, 2)
    a("s_mov_b64 exec, 1")
    a(f"buffer_atomic_add v{Z+1}, v{Z+2}, s[96:99], s100 offen sc1")
    a("s_mov_b64 exec, -1")
    tree_score(a, o, R)
    st(a, o, 3)
    a("s_barrier")
    a("s_barrier")
    T = R["T"]
    a(f"ds_read_b128 {vr(T,4)}, v{MROW}")
    a(f"ds_read_b128 {vr(T+4,4)}, v{MROW} offset:256")
    a("s_waitcnt lgkmcnt(0)")
    a(f"v_max3_f32 v{T}, v{T}, v{T+1}, v{T+2}")
    a(f"v_max_f32 v{T}, v{T+3}, v{T}")
    a(f"v_mul_f32 v{T}, s68, v{T}")
    a(f"v_add_f32 v{T+4}, v{T+4}, v{T+5}")
    a(f"v_add_f32 v{T+6}, v{T+6}, v{T+7}")
    a(f"v_add_f32 v{T+1}, v{T+4}, v{T+6}")
    a(f"v_min_u32 v{T}, s101, v{T}")
    a(f"v_min_u32 v{T+1}, s101, v{T+1}")
    a("s_mov_b64 exec, 0xff")
    a(f"buffer_store_dwordx2 {vr(T,2)}, v{OADR}, s[36:39], s93 offen sc1")
    a("s_mov_b64 exec, -1")
    st(a, o, 4)
    a(f"s_mov_b32 s101, {o['maxspin']}")
    a("L_cntspin:")
    a("s_sub_u32 s101, s101, 1")
    a("s_cbranch_scc1 L_giveup")
    a(f"buffer_load_dword v{R['CNT']}, v{Z+2}, s[96:99], s100 offen sc1")
    a("s_waitcnt vmcnt(0)")
    a(f"v_readfirstlane_b32 s94, v{R['CNT']}")
    a("s_nop 2")
    a("s_cmp_ge_u32 s94, 32")
    a("s_cbranch_scc0 L_cntspin")
    ML, F, Mx, L, stv, vt, X, O, OB = (R[k] for k in ("ML", "F", "M", "L", "st", "vt", "X", "O", "OB"))
    a("L_mlpoll:")
    a("s_sub_u32 s101, s101, 1")
    a("s_cbranch_scc1 L_giveup")
    for k in range(2):
        a(f"buffer_load_dwordx4 {vr(ML+4*k,4)}, v{R['om']}, s[36:39], s65 offen offset:{16*k} sc1")
    a("s_waitcnt vmcnt(0)")
    sent_check(a, ML, 8, X0, X1)
    a("s_cbranch_vccz L_mlgot")
    a(f"s_sleep {o['mlsleep']}")
    a("s_branch L_mlpoll")
    a("L_mlgot:")
    a(f"v_max3_f32 v{Mx}, v{ML}, v{ML+2}, v{stv}")
    a(f"v_max3_f32 v{Mx}, v{ML+4}, v{ML+6}, v{Mx}")
    a("s_nop 1")
    xlane_sum_all(a, [Mx], T, [8, 16, 32], op="v_max_f32")
    for k in range(4):
        a(f"v_sub_f32 v{F+k}, v{ML+2*k}, v{Mx}")
    a(f"v_sub_f32 v{F+4}, v{stv}, v{Mx}")
    for k in range(5):
        a(f"v_exp_f32 v{F+k}, v{F+k}")
    a("s_nop 0")
    a(f"v_mul_f32 v{L}, v{F}, v{ML+1}")
    for k in range(1, 4):
        a(f"v_fmac_f32 v{L}, v{F+k}, v{ML+2*k+1}")
    a("s_nop 1")
    xlane_sum_all(a, [L], T, [8, 16, 32])
    a(f"v_add_f32 v{L}, v{L}, v{F+4}")
    a(f"v_rcp_f32 v{L}, v{L}")
    a("s_nop 0")
    for k in range(5):
        a(f"v_mul_f32 v{F+k}, v{F+k}, v{L}")
    for r in range(4):
        a(f"v_mul_f32 v{OB+r}, v{F+4}, v{vt+r}")
    a("s_mov_b32 exec_lo, 0xffffff00")
    for r in range(4):
        a(f"v_mov_b32 v{OB+r}, 0")
    a("s_mov_b64 exec, -1")
    if dual:
        a(f"s_add_u32 s65, s64, {PO2_OFF:#x}")
    st(a, o, 5)
    a("s_barrier")
    st(a, o, 6)
    a("L_poll:")
    a("s_sub_u32 s101, s101, 1")
    a("s_cbranch_scc1 L_fin")
    if dual:
        for k in range(4):
            a(f"buffer_load_dwordx4 {vr(X+16+4*k,4)}, v{R['ox']}, s[36:39], s65 offen offset:{128*k} sc1")
    for k in range(4):
        a(f"buffer_load_dwordx4 {vr(X+4*k,4)}, v{R['ox']}, s[36:39], s64 offen offset:{128*k} sc1")
    a("s_waitcnt vmcnt(0)")
    if dual:
        for r in range(16):
            a(f"v_min_u32 v{X+r}, v{X+r}, v{X+16+r}")
    sent_check(a, X, 16, X0, X1)
    for r in range(4):
        a(f"v_fma_f32 v{O+r}, v{F}, v{X+r}, v{OB+r}")
    a("s_cbranch_vccnz L_poll")
    for k in range(1, 4):
        for r in range(4):
            a(f"v_fmac_f32 v{O+r}, v{F+k}, v{X+4*k+r}")
    xlane_sum_all(a, [O, O + 1, O + 2, O + 3], T, [8, 16, 32])
    a(f"v_cvt_pk_bf16_f32 v{O}, v{O}, v{O+1}")
    a(f"v_cvt_pk_bf16_f32 v{O+2}, v{O+2}, v{O+3}")
    a("s_mov_b64 exec, 0xff")
    OA = R["OA"]
    a(f"buffer_store_short v{O}, v{OA}, s[44:47], s66 offen")
    a(f"buffer_store_short_d16_hi v{O}, v{OA}, s[44:47], s66 offen offset:16")
    a(f"buffer_store_short v{O+2}, v{OA}, s[44:47], s66 offen offset:32")
    a(f"buffer_store_short_d16_hi v{O+2}, v{OA}, s[44:47], s66 offen offset:48")
    a("s_branch L_fin")
    a("L_giveup:")
    a("s_barrier")
    a("L_fin:")
    if o["stamp"]:
        st(a, o, 7)
        dump_stamps(a, o, 8, WAVE, nwaves=NW)
    if o["amp"]:
        st(a, o, 7)
        a("s_waitcnt lgkmcnt(0)")
        j = o["amp"]
        a(f"s_sub_u32 s60, s{70+2*j}, s70")
        a(f"s_mul_i32 s60, s60, {o['mult']}")
        a(f"s_add_u32 s60, s60, {o['base']}")
        a("L_spin:")
        a("s_sleep 8")
        a("s_memrealtime s[88:89]")
        a("s_waitcnt lgkmcnt(0)")
        a("s_sub_u32 s88, s88, s70")
        a("s_cmp_lt_u32 s88, s60")
        a("s_cbranch_scc1 L_spin")
    a("L_end:")
    a("s_endpgm")


def gen4(o):
    a = Asm()
    main = NAME + "_kernel"
    a.lines.append((HEADER + f"; @launch grid=(256,1,1) block=(320,1,1) lds={o['lds']}\n").rstrip())
    a('.amdgcn_target "amdgcn-amd-amdhsa--gfx950"')
    a(".text")
    a(f".globl {main}")
    kernel(a, o, main)
    a('.section .rodata,"a"')
    a(".p2align 6")
    kd(a, main, 256)
    return a.text()


if __name__ == "__main__":
    o = dict(nt="nt", map=1, stamp=0, amp=0, mult=0, base=6000, lds=17408, maxspin=20000, nb=4, mlsleep=8, dual=0, prio=3)
    for kv in sys.argv[2:]:
        k, v = kv.split("=")
        o[k] = int(v) if v.lstrip("-").isdigit() else v.replace("+", " ")
    open(sys.argv[1], "w").write(gen4(o))
```

```python
import re

TRANS = ("v_exp_f32", "v_rcp_f32", "v_log_f32", "v_rsq_f32", "v_sqrt_f32")


def regs(tok):
    tok = tok.strip().lstrip("-")
    m = re.fullmatch(r"([va])\[(\d+):(\d+)\]", tok)
    if m:
        return {(m.group(1), i) for i in range(int(m.group(2)), int(m.group(3)) + 1)}
    m = re.fullmatch(r"([va])(\d+)", tok)
    if m:
        return {(m.group(1), int(m.group(2)))}
    return set()


def parse(line):
    s = line.split(";")[0].strip()
    if not s or s.endswith(":") or s.startswith("."):
        return None
    parts = s.split(None, 1)
    op = parts[0]
    ops = []
    if len(parts) > 1:
        body = parts[1]
        ops = [t.strip().split(" ")[0] for t in body.split(",")]
    d = dict(op=op, w=set(), r=set(), c=set(), kind="other", states=1, dpp=False)
    if op == "s_nop":
        d["states"] = int(ops[0]) + 1
    elif op.startswith("v_mfma"):
        d["kind"] = "mfma"
        d["w"] = regs(ops[0]); d["r"] = regs(ops[1]) | regs(ops[2]); d["c"] = regs(ops[3])
    elif op.startswith("v_permlane"):
        d["kind"] = "perml"
        d["w"] = regs(ops[0]) | regs(ops[1]); d["r"] = set(d["w"])
    elif op.startswith("v_cmp") or op.startswith("v_readfirstlane") or op.startswith("v_readlane"):
        d["kind"] = "valu"
        for t in ops[1:]:
            d["r"] |= regs(t)
        if "lane" in op:
            d["kind"] = "rdlane"
    elif op.startswith("v_"):
        d["kind"] = "trans" if op.replace("_e32", "").replace("_e64", "") in TRANS else "valu"
        d["w"] = regs(ops[0])
        for t in ops[1:]:
            d["r"] |= regs(t)
        if op.startswith("v_fmac") or op.startswith("v_writelane") or op.startswith("v_mov_b32_dpp"):
            d["r"] |= d["w"]
        d["dpp"] = "_dpp" in op
    elif op.startswith("ds_write") or op.startswith("ds_add") or op.startswith("buffer_store") or op.startswith("buffer_atomic"):
        d["kind"] = "mem"
        for t in ops:
            d["r"] |= regs(t)
        d["wide_store"] = op.startswith("buffer_store_dwordx4") or op.startswith("buffer_store_dwordx3")
        d["data"] = regs(ops[0]) if op.startswith("buffer") else set()
    elif op.startswith("ds_read") or op.startswith("buffer_load") or op.startswith("ds_bpermute"):
        d["kind"] = "mem"
        d["ld"] = regs(ops[0])
        for t in ops[1:]:
            d["r"] |= regs(t)
    return d


def need(p, c):
    n = 0
    isv = c["kind"] in ("valu", "trans", "perml", "rdlane")
    if p["kind"] == "mfma":
        if c["kind"] == "mfma":
            if p["w"] & c["r"]:
                n = max(n, 8)
            if p["w"] & c["c"] and p["w"] != c["c"]:
                n = max(n, 6)
        elif isv and (p["w"] & (c["r"] | c["w"])):
            n = max(n, 8)
        elif c["kind"] == "mem" and (p["w"] & (c["r"] | c.get("ld", set()))):
            n = max(n, 8)
        if isv and (p["c"] & c["w"]):
            n = max(n, 3)
    if p["kind"] in ("valu", "trans", "perml"):
        if c["kind"] == "mfma" and (p["w"] & (c["r"] | c["c"])):
            n = max(n, 2)
        if (c["dpp"] or c["kind"] == "perml") and (p["w"] & c["r"]):
            n = max(n, 2)
        if c["kind"] == "rdlane" and (p["w"] & c["r"]):
            n = max(n, 1)
        if p["kind"] == "trans" and c["kind"] in ("valu", "perml", "rdlane", "mfma") and (p["w"] & c["r"]):
            n = max(n, 1)
    if p["kind"] == "mem" and p.get("wide_store") and isv and (p["data"] & c["w"]):
        n = max(n, 2)
    return n


def fix(lines):
    out = []
    hist = []
    pos = 0
    begin = None
    for ln in lines:
        if ln.strip() == ";SKIP_BEGIN":
            begin = (pos, len(hist))
            continue
        if ln.strip() == ";SKIP_END":
            pos = begin[0]
            for i in range(begin[1], len(hist)):
                hist[i] = (hist[i][0], pos - 1)
            begin = None
            continue
        d = parse(ln)
        if d is None:
            out.append(ln)
            continue
        req = 0
        for p, at in hist[-60:]:
            dist = pos - at - 1
            if dist >= 10:
                continue
            req = max(req, need(p, d) - dist)
        if req > 0:
            out.append(f"    s_nop {req-1}")
            pos += req
        out.append(ln)
        hist.append((d, pos))
        pos += d["states"]
        if d["states"] > 1:
            hist[-1] = (d, pos - 1)
    return out
```

```python
import sys
from gen import *
from gen4 import sent_check
import hz

NW = 5
PB_OFF = PO_BYTES
ML6_OFF = 2 * PO_BYTES
WS6_BYTES = ML6_OFF + 64 * 512
LM, LL, LF, LT, LFLAG = 0x4000, 0x4100, 0x4200, 0x4300, 0x4380


def st(a, o, idx):
    if o["stamp"] or o["amp"]:
        a(f"s_memrealtime s[{70+2*idx}:{71+2*idx}]")


def kernel(a, o, label):
    nt = o["nt"]
    NB = o["nb"]
    VK, VV, OADR, M, X0, X1, FROW, MWR, STA, WAVE, LANE, FLG, C1 = range(1, 14)
    Q0 = 16
    ONE = 16
    RING = 24
    S0 = 152
    W0 = S0 + 32
    T0 = 216
    O0, L0 = 216, 248
    KT = 252

    a(".p2align 8")
    a(f".type {label},@function")
    a(f"{label}:")
    a("s_cmp_ge_u32 s2, 256")
    a("s_cbranch_scc1 L_end")
    a(f"v_readfirstlane_b32 s69, v0")
    a(f"v_mov_b32 v{FLG}, {LFLAG:#x}")
    a("v_mov_b32 v24, 0")
    a("v_mov_b32 v25, 0")
    a("s_cmp_ge_u32 s69, 256")
    a("s_cbranch_scc0 L_worker")
    a(f"ds_write_b64 v{FLG}, v[24:25]")
    a(f"ds_write_b64 v{FLG}, v[24:25] offset:8")
    a(f"ds_write_b64 v{FLG}, v[24:25] offset:16")
    a("s_waitcnt lgkmcnt(0)")
    a("s_barrier")
    a("s_branch L_helper")
    a("L_worker:")
    a("s_load_dwordx16 s[4:19], s[0:1], 0")
    a("s_load_dwordx2 s[20:21], s[0:1], 64")
    st(a, o, 0)
    ids(a, o)
    a(f"v_lshrrev_b32 v{WAVE}, 6, v0")
    a(f"v_and_b32 v{LANE}, 63, v0")
    a(f"v_lshlrev_b32 v{VV}, 4, v{LANE}")
    a(f"v_lshl_add_u32 v{VV}, v{WAVE}, 13, v{VV}")
    a(f"v_bfe_u32 v{X0}, v0, 4, 2")
    a(f"v_and_b32 v{X1}, 3, v0")
    a(f"v_lshlrev_b32 v{M}, 4, v{X1}")
    a(f"v_lshl_add_u32 v{M}, v{X0}, 6, v{M}")
    a(f"v_bfe_u32 v{X1}, v0, 2, 2")
    a(f"v_lshl_add_u32 v{VK}, v{X1}, 8, v{M}")
    a(f"v_lshl_add_u32 v{VK}, v{WAVE}, 13, v{VK}")
    a(f"v_and_b32 v{X1}, 7, v0")
    a(f"v_lshlrev_b32 v{STA}, 4, v{X1}")
    a(f"v_lshlrev_b32 v{X1}, 8, v{X1}")
    a(f"v_lshl_add_u32 v{X1}, v{X0}, 6, v{X1}")
    a(f"v_bfe_u32 v{X0}, v0, 3, 1")
    a(f"v_lshl_add_u32 v{X1}, v{X0}, 4, v{X1}")
    a(f"v_lshrrev_b32 v{X0}, 3, v0")
    a(f"v_lshl_add_u32 v{STA}, v{X0}, 12, v{STA}")
    a("s_lshl_b32 s3, s22, 23")
    a("s_lshl_b32 s40, s23, 18")
    a("s_add_u32 s3, s3, s40")
    a("s_lshl_b32 s41, s22, 11")
    a("s_mov_b32 s26, 0x40000")
    a("s_mov_b32 s27, 0x20000")
    a("s_mov_b32 s34, 0x4000")
    a("s_mov_b32 s35, 0x20000")
    a("s_movk_i32 s91, 0x1000")
    a("s_barrier")
    a("s_waitcnt lgkmcnt(0)")
    st(a, o, 1)
    a("s_add_u32 s24, s6, s3")
    a("s_addc_u32 s25, s7, 0")

    W = o["w"]
    RN = 32

    def load(n):
        strm, t, i = n >> 6, (n >> 3) & 7, n & 7
        buf = RING + 4 * (n % RN)
        voff, sb = (VK, 24) if strm == 0 else (VV, 28)
        if t == 0:
            so = "0" if i < 4 else "s91"
        else:
            if i % 4 == 0:
                a(f"s_mov_b32 s90, {t*32768 + (i>>2)*4096:#x}")
            so = "s90"
        a(f"buffer_load_dwordx4 {vr(buf,4)}, v{voff}, s[{sb}:{sb+3}], {so} offen offset:{(i&3)*1024} {nt}")

    a("s_mov_b32 s32, s4")
    a("s_mov_b32 s33, s5")
    load(0)
    a(f"buffer_load_dwordx4 {vr(Q0,4)}, v{X1}, s[32:35], s41 offen")
    a(f"buffer_load_dwordx4 {vr(Q0+4,4)}, v{X1}, s[32:35], s41 offen offset:32")
    for n in range(1, W):
        load(n)
    st(a, o, 2)
    a("s_mov_b32 s36, s20")
    a("s_mov_b32 s37, s21")
    a(f"s_mov_b32 s38, {WS6_BYTES:#x}")
    a("s_mov_b32 s39, 0x20000")
    a("s_lshl_b32 s92, s22, 17")
    a("s_lshl_b32 s95, s23, 7")
    a("s_add_u32 s92, s92, s95")
    for r in range(4):
        a(f"v_mov_b32 v{L0+r}, -1")
    a("s_cmp_eq_u32 s69, 0")
    a("s_cbranch_scc1 L_side_done")
    if o["x_noclr"]:
        a("s_branch L_side_done")
    a(f"buffer_store_dwordx4 {vr(L0,4)}, v{STA}, s[36:39], s92 offen")
    a("s_cmp_eq_u32 s69, 64")
    a("s_cbranch_scc1 L_side_w1")
    a("s_cmp_eq_u32 s69, 128")
    a("s_cbranch_scc0 L_side_done")
    a(f"v_subrev_u32 v{X0}, 0x10000, v{STA}")
    a(f"buffer_store_dwordx4 {vr(L0,4)}, v{X0}, s[36:39], s92 offen")
    a("s_branch L_side_done")
    a("L_side_w1:")
    srd(a, 48, 10, 2048)
    a("s_lshl_b32 s61, s22, 8")
    a(f"buffer_load_dwordx4 {vr(KT,4)}, v{M}, s[48:51], s61 offen")
    a("L_side_done:")
    a("s_add_u32 s28, s8, s3")
    a("s_addc_u32 s29, s9, 0")
    a("s_mov_b32 s30, 0x40000")
    a("s_mov_b32 s31, 0x20000")
    a("s_mov_b32 s101, 0xfffffffe")
    a(f"s_mov_b32 s68, {C_SC:#x}")
    a("s_mov_b32 s42, 0x05040100")
    a("s_mov_b32 s43, 0x07060302")
    a(f"v_mov_b32 v{C1}, 1")
    a(f"v_and_b32 v{MWR}, 15, v0")
    a(f"v_lshlrev_b32 v{MWR}, 4, v{MWR}")
    a(f"v_lshl_add_u32 v{MWR}, v{WAVE}, 2, v{MWR}")
    a(f"v_lshrrev_b32 v{FROW}, 5, v0")
    a(f"v_lshlrev_b32 v{FROW}, 4, v{FROW}")
    a(f"v_and_b32 v{OADR}, 7, v0")
    a(f"v_mul_u32_u24 v{OADR}, 528, v{OADR}")
    a(f"v_lshl_add_u32 v{OADR}, v{WAVE}, 12, v{OADR}")
    a(f"v_bfe_u32 v{X0}, v0, 4, 2")
    a(f"v_lshl_add_u32 v{OADR}, v{X0}, 7, v{OADR}")

    def flag(n):
        a("s_mov_b64 exec, 1")
        a(f"ds_add_u32 v{FLG}, v{C1} offset:{4*n}")
        a("s_mov_b64 exec, -1")

    items = []
    def item(lines, need=-1, cost=None, frees=None):
        if isinstance(lines, str):
            lines = [lines]
        if cost is None:
            cost = sum(10 if l.startswith("v_mfma") else 8 if l.startswith("v_exp") else 4 for l in lines)
        items.append((lines, cost, need, frees))
    def sub(fn, *args, **kw):
        b = Asm()
        fn(b, *args, **kw)
        return [l.strip() for l in b.lines]
    def flagl(n):
        return ["s_mov_b64 exec, 1", f"ds_add_u32 v{FLG}, v{C1} offset:{4*n}", "s_mov_b64 exec, -1"]
    def KB(j):
        return RING + 4 * (j % RN)
    for j in range(64 + 5):
        need = max(min(j, 63), 1)
        if j < 64:
            i = j % 8
            item(f"v_mfma_f32_16x16x32_bf16 {vr(T0+4*i+2,4)}, {vr(KB(j),4)}, {vr(Q0,4)}, 0", need)
        if 0 <= j - 2 < 64:
            i = (j - 2) % 8
            item(f"v_mfma_f32_16x16x32_bf16 {vr(T0+4*i,4)}, {vr(KB(j-2),4)}, {vr(Q0+4,4)}, {vr(T0+4*i,4)}", need, frees=j - 2)
        jj = j - 5
        if 0 <= jj < 64:
            i = jj % 8
            item(f"v_add_f32_dpp v{S0+jj}, v{T0+4*i+3}, v{T0+4*i+2} row_ror:8 row_mask:0xf bank_mask:0xf", need)
            if jj == 1:
                item(f"v_max_f32 v{M}, v{S0}, v{S0+1}", need)
            elif jj % 2 == 1:
                item(f"v_max3_f32 v{M}, v{S0+jj-1}, v{S0+jj}, v{M}", need)
        if j == W + 2:
            item(["s_cmp_eq_u32 s69, 64", "s_cbranch_scc0 L_notree", ";SKIP_BEGIN",
                  f"v_mfma_f32_16x16x32_bf16 {vr(W0+2,4)}, {vr(KT,4)}, {vr(Q0,4)}, 0",
                  f"v_mfma_f32_16x16x32_bf16 {vr(W0,4)}, {vr(KT,4)}, {vr(Q0+4,4)}, {vr(W0,4)}",
                  f"v_and_b32 v{X0}, 15, v0", f"v_lshlrev_b32 v{X0}, 2, v{X0}",
                  f"v_add_f32_dpp v{X1}, v{W0+3}, v{W0+2} row_ror:8 row_mask:0xf bank_mask:0xf",
                  f"ds_write_b32 v{X0}, v{X1} offset:{LT}", ";SKIP_END", "L_notree:"] + flagl(0), need, cost=20)
    if o["stamp"] or o["amp"]:
        item(sub(st, o, 3), 63)
    xl = [l for l in sub(xlane_sum_all, [M], X0, [16, 32], op="v_max_f32") if not l.startswith("s_nop")]
    item(xl, 63)
    item([f"v_mov_b32 v{ONE+r}, 0x3f803f80" for r in range(4)] + [f"v_mul_f32 v{M}, s68, v{M}",
          f"ds_write_b32 v{MWR}, v{M} offset:{LM}"], 63)
    for t in range(8):
        for i in range(8):
            item(f"v_fma_f32 v{S0+8*t+i}, v{S0+8*t+i}, s68, -v{M}", 63)
        for i in range(8):
            item(f"v_exp_f32 v{S0+8*t+i}, v{S0+8*t+i}", 63)
        if t > 0:
            for k in range(4 * t - 4, 4 * t):
                item(f"v_cvt_pk_bf16_f32 v{S0+k}, v{S0+2*k}, v{S0+2*k+1}", 63)
        if t > 1:
            c = "0" if t == 2 else vr(L0, 4)
            item(f"v_mfma_f32_16x16x32_bf16 {vr(L0,4)}, {vr(ONE,4)}, {vr(S0+4*(t-2),4)}, {c}", 63)
    for k in range(28, 32):
        item(f"v_cvt_pk_bf16_f32 v{S0+k}, v{S0+2*k}, v{S0+2*k+1}", 63)
    item(f"v_mfma_f32_16x16x32_bf16 {vr(L0,4)}, {vr(ONE,4)}, {vr(S0+24,4)}, {vr(L0,4)}", 63)
    item(f"v_mfma_f32_16x16x32_bf16 {vr(L0,4)}, {vr(ONE,4)}, {vr(S0+28,4)}, {vr(L0,4)}", 63)
    item([f"v_lshlrev_b32 v{X1}, 4, v0", "s_mov_b32 s94, 0x00ff00ff", "s_mov_b32 s95, 0x00ff00ff",
          f"ds_write_b32 v{MWR}, v{L0} offset:{LL}"] + flagl(1), 63, cost=60)
    if o["stamp"] or o["amp"]:
        item(sub(st, o, 4), 63)
    for t in range(8):
        if t == o["pollat"] or t == 7:
            item(flagl(2), 63 + 8 * t)
        for m in range(4):
            n0 = 64 + 8 * t + 2 * m
            ls = []
            for u in range(4):
                for half in range(2):
                    j = 2 * u + half
                    ls.append(f"v_perm_b32 v{W0+4*j+m}, v{KB(n0+1)+u}, v{KB(n0)+u}, s{42+half}")
            item(ls, n0 + 1, frees=n0 + 1)
        for j in range(8):
            c = "0" if t == 0 else vr(O0 + 4 * j, 4)
            item(f"v_mfma_f32_16x16x32_bf16 {vr(O0+4*j,4)}, {vr(W0+4*j,4)}, {vr(S0+4*t,4)}, {c}", 64 + 8 * t + 7, cost=16)
        if t == 5:
            item([f"v_xor_b32 v{S0+j}, {j<<4}, v{OADR}" for j in range(1, 8)], 64 + 8 * t + 7)
    start = len(a.lines)
    q = 0
    freed = -1
    for n in range(W, 128):
        assert n - RN <= freed, (n, freed)
        a(f"s_waitcnt vmcnt({W-1})")
        load(n)
        avail = n - W
        budget = o["budget"]
        while q < len(items) and items[q][2] <= avail and budget > 0:
            for l in items[q][0]:
                a(l)
            budget -= items[q][1]
            if items[q][3] is not None:
                freed = items[q][3]
            q += 1
    avail = 127 - W
    while q < len(items):
        if items[q][2] > avail:
            avail = items[q][2]
            a(f"s_waitcnt vmcnt({127-avail})")
        for l in items[q][0]:
            a(l)
        q += 1
    st(a, o, 5)
    a("s_mov_b64 exec, s[94:95]")
    for j in range(8):
        a(f"ds_write_b128 v{OADR if j == 0 else S0+j}, {vr(O0+4*j,4)}")
    a("s_mov_b64 exec, -1")
    a.lines[start:] = hz.fix(a.lines[start:])
    a("s_waitcnt lgkmcnt(0)")
    a("s_barrier")
    OR, FR = RING, RING + 16
    a(f"ds_read_b128 {vr(FR,4)}, v{FROW} offset:{LF}")
    for w in range(4):
        a(f"ds_read_b128 {vr(OR+4*w,4)}, v{X1} offset:{4096*w}")
    a(f"ds_read_b32 v{X0}, v{FLG} offset:12")
    fine = not (o["stamp"] or o["amp"])
    for w in range(4):
        a(f"s_waitcnt lgkmcnt({4-w})" if fine else "s_waitcnt lgkmcnt(0)")
        for r in range(4):
            if w == 0:
                a(f"v_mul_f32 v{OR+r}, v{FR}, v{OR+r}")
            else:
                a(f"v_fmac_f32 v{OR+r}, v{FR+w}, v{OR+4*w+r}")
    for r in range(4):
        a(f"v_min_u32 v{OR+r}, s101, v{OR+r}")
    a(f"buffer_store_dwordx4 {vr(OR,4)}, v{STA}, s[36:39], s92 offen")
    st(a, o, 6)
    a("s_waitcnt lgkmcnt(0)")
    a(f"v_readfirstlane_b32 s94, v{X0}")
    a(f"s_add_u32 s92, s92, {PB_OFF:#x}")
    a("s_nop 1")
    a("s_cmp_eq_u32 s94, 1")
    a("s_cbranch_scc1 L_fin")
    a(f"buffer_store_dwordx4 {vr(OR,4)}, v{STA}, s[36:39], s92 offen sc1")
    a("s_waitcnt vmcnt(0)")
    flag(4)
    a("s_branch L_fin")

    a("L_helper:")
    B = RING
    R = dict(mk=B + 2, st=B + 3, vt=B + 4, om=B + 5, Z0=B + 6, OA=B + 7, ox=B + 8,
             M=B + 12, L=B + 13, CNT=B + 14, ROW=B + 15, X=B + 16, ML=B + 32, F=B + 36, O=B + 44, T=B + 48,
             Z=B + 56, OB=B + 60, MLA=B + 64, VTA=B + 65, BP=B + 66)
    Z, Z0, T = R["Z"], R["Z0"], R["T"]
    ids(a, o)
    a(f"v_lshrrev_b32 v{WAVE}, 6, v0")
    if o["x_nohelp"]:
        a("s_endpgm")
    a("s_load_dwordx16 s[4:19], s[0:1], 0")
    a("s_load_dwordx2 s[20:21], s[0:1], 64")
    st(a, o, 0)
    a(f"v_and_b32 v{LANE}, 63, v0")
    a("s_lshr_b32 s40, s23, 2")
    a("s_and_b32 s41, s23, 3")
    a("s_lshl_b32 s100, s22, 5")
    a("s_lshl_b32 s93, s22, 12")
    a("s_lshl_b32 s95, s23, 4")
    a("s_add_u32 s93, s93, s95")
    a(f"s_add_u32 s93, s93, {ML6_OFF:#x}")
    a("s_lshl_b32 s60, s22, 3")
    a("s_add_u32 s60, s60, s40")
    a("s_lshl_b32 s65, s60, 9")
    a(f"s_add_u32 s65, s65, {ML6_OFF:#x}")
    a("s_lshl_b32 s60, s60, 8")
    a("s_lshl_b32 s61, s22, 8")
    a("s_lshl_b32 s67, s41, 6")
    a("s_add_u32 s63, s61, s67")
    a("s_add_u32 s66, s60, s67")
    a("s_lshl_b32 s64, s22, 17")
    a("s_lshl_b32 s67, s23, 12")
    a("s_add_u32 s64, s64, s67")
    a("s_lshr_b32 s62, s22, 2")
    a("s_lshl_b32 s62, s62, 4")
    for d, n in ((36, WS6_BYTES), (44, 0x4000), (96, 256)):
        a(f"s_mov_b32 s{d+2}, {n:#x}")
        a(f"s_mov_b32 s{d+3}, 0x20000")
    for r in range(4):
        a(f"v_mov_b32 v{Z+r}, -1")
    a(f"v_mov_b32 v{Z0}, 0")
    a(f"v_and_b32 v{X0}, 7, v{LANE}")
    a(f"v_lshlrev_b32 v{R['MLA']}, 9, v{X0}")
    a(f"v_xor_b32 v{R['OA']}, s40, v{X0}")
    a(f"v_lshlrev_b32 v{R['OA']}, 1, v{R['OA']}")
    a(f"v_bfe_u32 v{X1}, v{LANE}, 3, 2")
    a(f"v_lshl_add_u32 v{R['VTA']}, v{X1}, 4, v{R['OA']}")
    a(f"v_lshrrev_b32 v{X1}, 3, v{LANE}")
    a(f"v_lshlrev_b32 v{R['ox']}, 9, v{X1}")
    a(f"v_lshl_add_u32 v{R['ox']}, v{X0}, 4, v{R['ox']}")
    a(f"v_lshlrev_b32 v{R['BP']}, 4, v{X1}")
    a(f"v_and_b32 v{R['om']}, 31, v{LANE}")
    a(f"v_lshlrev_b32 v{R['om']}, 4, v{R['om']}")
    a(f"v_and_b32 v{R['ROW']}, 15, v{LANE}")
    a(f"v_lshlrev_b32 v{R['ROW']}, 4, v{R['ROW']}")
    a(f"v_mov_b32 v{C1}, 1")
    a(f"s_mov_b32 s58, {o['maxspin']}")
    a("s_mov_b32 s101, 0xfffffffe")
    a("s_getreg_b32 s57, hwreg(HW_REG_XCC_ID, 0, 4)")
    if o["fakexcc"]:
        a("s_lshr_b32 s57, s2, 3")
        a("s_and_b32 s57, s57, 1")
    a("s_waitcnt lgkmcnt(0)")
    st(a, o, 1)
    a("s_mov_b32 s36, s20")
    a("s_mov_b32 s37, s21")
    a("s_load_dword s56, s[14:15], 0")
    a("s_load_dwordx16 s[24:39], s[12:13], s63") if False else None
    a("s_add_u32 s12, s12, s63")
    a("s_addc_u32 s13, s13, 0")
    a("s_load_dwordx16 s[48:55], s[12:13], 0") if False else None
    a("s_load_dwordx8 s[24:31], s[12:13], 0")
    a("s_load_dwordx8 s[48:55], s[12:13], 32")
    a("s_mov_b32 s44, s16")
    a("s_mov_b32 s45, s17")
    a("s_mov_b32 s96, s18")
    a("s_mov_b32 s97, s19")
    a("s_setprio 3")
    a("s_mov_b64 exec, 0xff")
    a(f"buffer_store_dwordx4 {vr(Z,4)}, v{R['MLA']}, s[36:39], s93 offen sc1")
    a("s_mov_b64 exec, -1")
    a("s_setprio 0")
    a("s_waitcnt lgkmcnt(0)")
    vt, stv = R["vt"], R["st"]
    for i in range(16):
        a(f"v_writelane_b32 v{X0}, s{24+i if i < 8 else 40+i}, {i}")
    a(f"v_and_b32 v{X1}, 0x3c, v{R['VTA']}")
    a(f"ds_bpermute_b32 v{vt}, v{X1}, v{X0}")
    a(f"v_and_b32 v{X1}, 2, v{R['VTA']}")
    a(f"v_lshlrev_b32 v{X1}, 3, v{X1}")
    a("s_lshr_b32 s56, s56, s62")
    a("s_lshl_b32 s56, s56, 16")
    a(f"v_sub_f32 v{R['mk']}, 1.0, s56")
    a(f"v_mul_f32 v{R['mk']}, {C_MASK:#x}, v{R['mk']}")
    a("s_waitcnt lgkmcnt(0)")
    a(f"v_lshrrev_b32 v{vt}, v{X1}, v{vt}")
    a(f"v_lshlrev_b32 v{vt}, 16, v{vt}")
    a("s_waitcnt vmcnt(0)")
    st(a, o, 2)

    def ldsspin(n, val, lab):
        a(f"{lab}:")
        a("s_sub_u32 s58, s58, 1")
        a("s_cbranch_scc1 L_giveup")
        a(f"ds_read_b32 v{X0}, v{FLG} offset:{4*n}")
        a("s_waitcnt lgkmcnt(0)")
        a(f"v_readfirstlane_b32 s94, v{X0}")
        a(f"s_sleep {o['ldssleep']}")
        a(f"s_cmp_ge_u32 s94, {val}")
        a(f"s_cbranch_scc0 {lab}")

    ldsspin(0, 4, "L_sp0")
    a("s_setprio 3")
    a("s_mov_b64 exec, 1")
    if not o["x_noat"]:
        a(f"buffer_atomic_add v{C1}, v{Z0}, s[96:99], s100 offen sc1")
    a("s_mov_b64 exec, -1")
    a("s_setprio 0")
    a("s_lshl_b32 s94, s40, 2")
    a(f"v_mov_b32 v{X1}, s94")
    a(f"ds_read_b32 v{stv}, v{X1} offset:{LT}")
    a("s_waitcnt lgkmcnt(0)")
    a(f"v_mul_f32 v{stv}, {C_SC:#x}, v{stv}")
    a(f"v_add_f32 v{stv}, v{stv}, v{R['mk']}")
    st(a, o, 3)
    ldsspin(1, 4, "L_sp1")
    a(f"ds_read_b128 {vr(T,4)}, v{R['ROW']} offset:{LM}")
    a(f"ds_read_b128 {vr(T+4,4)}, v{R['ROW']} offset:{LL}")
    a("s_waitcnt lgkmcnt(0)")
    a(f"v_max3_f32 v{Z}, v{T}, v{T+1}, v{T+2}")
    a(f"v_max_f32 v{Z}, v{T+3}, v{Z}")
    for w in range(4):
        a(f"v_sub_f32 v{T+w}, v{T+w}, v{Z}")
    for w in range(4):
        a(f"v_exp_f32 v{T+w}, v{T+w}")
    a(f"v_mov_b32 v{Z+2}, s57")
    a(f"v_mov_b32 v{Z+3}, 0")
    a(f"ds_write_b128 v{R['ROW']}, {vr(T,4)} offset:{LF}")
    a(f"v_mul_f32 v{Z+1}, v{T}, v{T+4}")
    for w in range(1, 4):
        a(f"v_fmac_f32 v{Z+1}, v{T+w}, v{T+4+w}")
    a(f"v_min_u32 v{Z}, s101, v{Z}")
    a(f"v_min_u32 v{Z+1}, s101, v{Z+1}")
    a("s_setprio 3")
    a("s_mov_b64 exec, 0xff")
    a(f"buffer_store_dwordx4 {vr(Z,4)}, v{R['MLA']}, s[36:39], s93 offen sc1")
    a("s_mov_b64 exec, -1")
    a(f"buffer_load_dword v{R['CNT']}, v{Z0}, s[96:99], s100 offen sc1")
    a("s_setprio 0")
    st(a, o, 4)
    if o["x_nopoll"]:
        a("s_branch L_giveup")
    ldsspin(2, 1, "L_sp2")
    a("s_setprio 3")
    ML, F, Mx, L, X, O, OB, ox = (R[k] for k in ("ML", "F", "M", "L", "X", "O", "OB", "ox"))
    a("s_mov_b32 s59, 0")
    a("s_branch L_mlchk")
    a("L_mlpoll:")
    a("s_sub_u32 s58, s58, 1")
    a("s_cbranch_scc1 L_giveup2")
    a(f"buffer_load_dword v{R['CNT']}, v{Z0}, s[96:99], s100 offen sc1")
    a("L_mlchk:")
    a("s_waitcnt vmcnt(0)")
    a(f"v_readfirstlane_b32 s94, v{R['CNT']}")
    a("s_nop 2")
    a("s_and_b32 s94, s94, 0xffff")
    a("s_cmp_ge_u32 s94, 32")
    a("s_cbranch_scc0 L_mlmiss")
    a("L_mlpoll2:")
    a(f"buffer_load_dwordx4 {vr(ML,4)}, v{R['om']}, s[36:39], s65 offen sc1")
    a("s_waitcnt vmcnt(0)")
    a(f"v_max3_u32 v{X0}, v{ML}, v{ML+1}, v{ML+2}")
    a(f"v_cmp_eq_u32 vcc, -1, v{X0}")
    a("s_cbranch_vccz L_mlgot")
    a("L_mlmiss:")
    a("s_cmp_eq_u32 s59, 0")
    a("s_cbranch_scc0 L_mlagain")
    a(f"s_sleep {o['mlsleep']}")
    a(f"ds_read_b32 v{X0}, v{FLG} offset:8")
    a("s_waitcnt lgkmcnt(0)")
    a(f"v_readfirstlane_b32 s95, v{X0}")
    a("s_nop 2")
    a("s_cmp_le_u32 s95, 4")
    a("s_cbranch_scc1 L_mlagain")
    a("s_barrier")
    a("s_mov_b32 s59, 1")
    a("L_mlagain:")
    a("s_cmp_ge_u32 s94, 32")
    a("s_cbranch_scc0 L_mlpoll")
    a("s_sub_u32 s58, s58, 1")
    a("s_cbranch_scc0 L_mlpoll2")
    a("s_branch L_giveup2")
    a("L_mlgot:")
    a(f"v_cmp_ne_u32 vcc, s57, v{ML+2}")
    a(f"v_max_f32 v{Mx}, v{ML}, v{stv}")
    a("s_cmp_eq_u64 vcc, 0")
    a("s_cselect_b32 s56, 1, 0")
    a(f"v_mov_b32 v{X1}, s56")
    a(f"ds_write_b32 v{FLG}, v{X1} offset:12")
    xlane_sum_all(a, [Mx], T, [1, 2, 4, 8, 16], op="v_max_f32")
    a(f"v_sub_f32 v{F+5}, v{ML}, v{Mx}")
    a(f"v_sub_f32 v{F+4}, v{stv}, v{Mx}")
    a(f"v_exp_f32 v{F+5}, v{F+5}")
    a(f"v_exp_f32 v{F+4}, v{F+4}")
    a("s_nop 0")
    a(f"v_mul_f32 v{L}, v{F+5}, v{ML+1}")
    a("s_nop 1")
    xlane_sum_all(a, [L], T, [1, 2, 4, 8, 16])
    a(f"v_add_f32 v{L}, v{L}, v{F+4}")
    a(f"v_rcp_f32 v{L}, v{L}")
    a("s_nop 0")
    a(f"v_mul_f32 v{F+5}, v{F+5}, v{L}")
    a(f"v_mul_f32 v{F+4}, v{F+4}, v{L}")
    for k in range(4):
        a(f"ds_bpermute_b32 v{F+k}, v{R['BP']}, v{F+5} offset:{4*k}")
    a(f"v_mul_f32 v{X0}, v{F+4}, v{vt}")
    for r in range(4):
        a(f"v_mov_b32 v{OB+r}, 0")
    for r in range(4):
        a(f"s_mov_b64 exec, {0xff << (8*r):#x}") if r < 3 else a("s_mov_b32 exec_lo, 0xff000000")
        a(f"v_mov_b32 v{OB+r}, v{X0}")
    a("s_mov_b64 exec, -1")
    a("s_waitcnt lgkmcnt(0)")
    st(a, o, 5)
    a("s_cmp_eq_u32 s59, 0")
    a("s_cbranch_scc0 L_postbar")
    a("s_barrier")
    a("L_postbar:")
    st(a, o, 6)
    a("s_cmp_eq_u32 s56, 1")
    a("s_cbranch_scc1 L_poll")
    a("s_mov_b32 s59, 1")
    a("L_sp4:")
    a("s_sub_u32 s58, s58, 1")
    a("s_cbranch_scc1 L_fin")
    a(f"ds_read_b32 v{X0}, v{FLG} offset:16")
    a("s_waitcnt lgkmcnt(0)")
    a(f"v_readfirstlane_b32 s94, v{X0}")
    a("s_nop 2")
    a("s_cmp_ge_u32 s94, 4")
    a("s_cbranch_scc0 L_sp4")
    a(f"v_mov_b32 v{X0}, 0x10000")
    a("s_mov_b64 exec, 1")
    a(f"buffer_atomic_add v{X0}, v{Z0}, s[96:99], s100 offen sc1")
    a("s_mov_b64 exec, -1")
    a("L_c2:")
    a("s_sub_u32 s58, s58, 1")
    a("s_cbranch_scc1 L_fin")
    a(f"buffer_load_dword v{R['CNT']}, v{Z0}, s[96:99], s100 offen sc1")
    a("s_waitcnt vmcnt(0)")
    a(f"v_readfirstlane_b32 s94, v{R['CNT']}")
    a("s_nop 2")
    a("s_lshr_b32 s94, s94, 16")
    a("s_cmp_ge_u32 s94, 32")
    a("s_cbranch_scc0 L_c2")
    a(f"s_add_u32 s64, s64, {PB_OFF:#x}")
    a("L_poll:")
    a("s_sub_u32 s58, s58, 1")
    a("s_cbranch_scc1 L_fin")
    for k in range(4):
        a(f"buffer_load_dwordx4 {vr(X+4*k,4)}, v{ox}, s[36:39], s64 offen offset:{128*k} sc1")
    a("s_waitcnt vmcnt(0)")
    sent_check(a, X, 16, X0, X1)
    for r in range(4):
        a(f"v_fma_f32 v{O+r}, v{F}, v{X+r}, v{OB+r}")
    a("s_cbranch_vccnz L_poll")
    for k in range(1, 4):
        for r in range(4):
            a(f"v_fmac_f32 v{O+r}, v{F+k}, v{X+4*k+r}")
    xlane_sum_all(a, [O, O + 1, O + 2, O + 3], T, [8, 16, 32])
    a(f"v_cvt_pk_bf16_f32 v{O}, v{O}, v{O+1}")
    a(f"v_cvt_pk_bf16_f32 v{O+2}, v{O+2}, v{O+3}")
    a("s_mov_b64 exec, 0xff")
    OA = R["OA"]
    a(f"buffer_store_short v{O}, v{OA}, s[44:47], s66 offen")
    a(f"buffer_store_short_d16_hi v{O}, v{OA}, s[44:47], s66 offen offset:16")
    a(f"buffer_store_short v{O+2}, v{OA}, s[44:47], s66 offen offset:32")
    a(f"buffer_store_short_d16_hi v{O+2}, v{OA}, s[44:47], s66 offen offset:48")
    a("s_branch L_fin")
    a("L_giveup2:")
    a("s_cmp_eq_u32 s59, 0")
    a("s_cbranch_scc0 L_fin")
    a("L_giveup:")
    a("s_barrier")
    a("L_fin:")
    if o["stamp"]:
        st(a, o, 7)
        dump_stamps(a, o, 8, WAVE, nwaves=NW)
    if o["amp"]:
        st(a, o, 7)
        a("s_waitcnt lgkmcnt(0)")
        j = o["amp"]
        a(f"s_sub_u32 s60, s{70+2*j}, s70")
        a(f"s_mul_i32 s60, s60, {o['mult']}")
        a(f"s_add_u32 s60, s60, {o['base']}")
        if j != 7:
            a("s_cmp_ge_u32 s69, 256")
            a("s_cbranch_scc1 L_end")
        a("L_spin:")
        a("s_sleep 8")
        a("s_memrealtime s[88:89]")
        a("s_waitcnt lgkmcnt(0)")
        a("s_sub_u32 s88, s88, s70")
        a("s_cmp_lt_u32 s88, s60")
        a("s_cbranch_scc1 L_spin")
    a("L_end:")
    a("s_endpgm")


def gen7(o):
    a = Asm()
    main = NAME + "_kernel"
    a.lines.append((HEADER + f"; @launch grid=(256,1,1) block=(320,1,1) lds={o['lds']}\n").rstrip())
    a('.amdgcn_target "amdgcn-amd-amdhsa--gfx950"')
    a(".text")
    a(f".globl {main}")
    kernel(a, o, main)
    a('.section .rodata,"a"')
    a(".p2align 6")
    kd(a, main, 256)
    return a.text()


if __name__ == "__main__":
    o = dict(nt="nt", map=1, stamp=0, amp=0, mult=0, base=6000, lds=17408, maxspin=100000, nb=3, mlsleep=16,
             ldssleep=4, pollat=3, dummy=0, fakexcc=0, x_noclr=0, x_nohelp=0, x_noat=0, x_nopoll=0, w=6, budget=160)
    for kv in sys.argv[2:]:
        k, v = kv.split("=")
        o[k] = int(v) if v.lstrip("-").isdigit() else v.replace("+", " ")
    open(sys.argv[1], "w").write(gen7(o))
```

```python
import sys
from gen import Asm, vr, srd, HEADER, NAME, C_SC, C_MASK, xlane_sum_all, dump_stamps, kd, ids
from gen4 import sent_check
import hz

NW = 5
PO_BYTES = 8 * 131072
PB_OFF = PO_BYTES
ML_OFF = 2 * PO_BYTES
WS_BYTES = ML_OFF + 8 * 4096
LM, LL, LF, LT, LFLAG = 0x4000, 0x4100, 0x4200, 0x4300, 0x4380
F_ML, F_PROG, F_MODE, F_PB = 0, 4, 8, 12


def st(a, o, idx):
    if o["stamp"] or o["amp"]:
        a(f"s_memrealtime s[{70+2*idx}:{71+2*idx}]")


def kernel(a, o, label):
    nt = o["nt"]
    W = o["w"]
    RN = 32
    VK, VV, OADR, M, X0, X1, FROW, MWR, STA, WAVE, LANE, FLG, C1 = range(1, 14)
    Q0 = 16
    ONE = 16
    RING = 24
    S0 = 152
    W0 = S0 + 32
    T0 = 216
    O0, L0 = 216, 248
    KT = 252

    a(".p2align 8")
    a(f".type {label},@function")
    a(f"{label}:")
    a("s_cmp_ge_u32 s2, 256")
    a("s_cbranch_scc1 L_end")
    a("v_readfirstlane_b32 s69, v0")
    a(f"v_mov_b32 v{FLG}, {LFLAG:#x}")
    a("v_mov_b32 v24, 0")
    a("v_mov_b32 v25, 0")
    a("s_cmp_ge_u32 s69, 256")
    a("s_cbranch_scc0 L_worker")
    a(f"ds_write_b64 v{FLG}, v[24:25]")
    a(f"ds_write_b64 v{FLG}, v[24:25] offset:8")
    a("s_waitcnt lgkmcnt(0)")
    a("s_barrier")
    a("s_branch L_helper")
    a("L_worker:")
    a("s_load_dwordx16 s[4:19], s[0:1], 0")
    a("s_load_dwordx2 s[20:21], s[0:1], 64")
    st(a, o, 0)
    ids(a, o)
    a(f"v_lshrrev_b32 v{WAVE}, 6, v0")
    a(f"v_and_b32 v{LANE}, 63, v0")
    a(f"v_lshlrev_b32 v{VV}, 4, v{LANE}")
    a(f"v_lshl_add_u32 v{VV}, v{WAVE}, 13, v{VV}")
    a(f"v_bfe_u32 v{X0}, v0, 4, 2")
    a(f"v_and_b32 v{X1}, 3, v0")
    a(f"v_lshlrev_b32 v{M}, 4, v{X1}")
    a(f"v_lshl_add_u32 v{M}, v{X0}, 6, v{M}")
    a(f"v_bfe_u32 v{X1}, v0, 2, 2")
    a(f"v_lshl_add_u32 v{VK}, v{X1}, 8, v{M}")
    a(f"v_lshl_add_u32 v{VK}, v{WAVE}, 13, v{VK}")
    a(f"v_and_b32 v{X1}, 7, v0")
    a(f"v_lshlrev_b32 v{STA}, 4, v{X1}")
    a(f"v_lshlrev_b32 v{X1}, 8, v{X1}")
    a(f"v_lshl_add_u32 v{X1}, v{X0}, 6, v{X1}")
    a(f"v_bfe_u32 v{X0}, v0, 3, 1")
    a(f"v_lshl_add_u32 v{X1}, v{X0}, 4, v{X1}")
    a(f"v_lshrrev_b32 v{X0}, 3, v0")
    a(f"v_lshl_add_u32 v{STA}, v{X0}, 12, v{STA}")
    a("s_lshl_b32 s3, s22, 23")
    a("s_lshl_b32 s40, s23, 18")
    a("s_add_u32 s3, s3, s40")
    a("s_lshl_b32 s41, s22, 11")
    a("s_mov_b32 s26, 0x40000")
    a("s_mov_b32 s27, 0x20000")
    a("s_mov_b32 s34, 0x4000")
    a("s_mov_b32 s35, 0x20000")
    a("s_movk_i32 s91, 0x1000")
    a("s_barrier")
    a("s_waitcnt lgkmcnt(0)")
    st(a, o, 1)
    a("s_add_u32 s24, s6, s3")
    a("s_addc_u32 s25, s7, 0")

    def load(n):
        strm, t, i = n >> 6, (n >> 3) & 7, n & 7
        buf = RING + 4 * (n % RN)
        voff, sb = (VK, 24) if strm == 0 else (VV, 28)
        if t == 0:
            so = "0" if i < 4 else "s91"
        else:
            if i % 4 == 0:
                a(f"s_mov_b32 s90, {t*32768 + (i>>2)*4096:#x}")
            so = "s90"
        a(f"buffer_load_dwordx4 {vr(buf,4)}, v{voff}, s[{sb}:{sb+3}], {so} offen offset:{(i&3)*1024} {nt}")

    load(0)
    a("s_mov_b32 s32, s4")
    a("s_mov_b32 s33, s5")
    a(f"buffer_load_dwordx4 {vr(Q0,4)}, v{X1}, s[32:35], s41 offen")
    a(f"buffer_load_dwordx4 {vr(Q0+4,4)}, v{X1}, s[32:35], s41 offen offset:32")
    for n in range(1, W):
        load(n)
    st(a, o, 2)
    a("s_mov_b32 s36, s20")
    a("s_mov_b32 s37, s21")
    a(f"s_mov_b32 s38, {WS_BYTES:#x}")
    a("s_mov_b32 s39, 0x20000")
    a("s_lshl_b32 s92, s22, 17")
    a("s_lshl_b32 s95, s23, 7")
    a("s_add_u32 s92, s92, s95")
    for r in range(4):
        a(f"v_mov_b32 v{L0+r}, -1")
    a(f"buffer_store_dwordx4 {vr(L0,4)}, v{STA}, s[36:39], s92 offen")
    a("s_cmp_eq_u32 s69, 64")
    a("s_cbranch_scc0 L_side_done")
    srd(a, 48, 10, 2048)
    a("s_lshl_b32 s61, s22, 8")
    a(f"buffer_load_dwordx4 {vr(KT,4)}, v{M}, s[48:51], s61 offen")
    a("L_side_done:")
    a("s_add_u32 s28, s8, s3")
    a("s_addc_u32 s29, s9, 0")
    a("s_mov_b32 s30, 0x40000")
    a("s_mov_b32 s31, 0x20000")
    a("s_mov_b32 s101, 0xfffffffe")
    a(f"s_mov_b32 s68, {C_SC:#x}")
    a("s_mov_b32 s42, 0x05040100")
    a("s_mov_b32 s43, 0x07060302")
    if o["we"]:
        a("s_getreg_b32 s57, hwreg(HW_REG_XCC_ID, 0, 3)")
        a(f"s_lshr_b32 s57, {o['fastmask']:#x}, s57")
        a("s_and_b32 vcc_lo, s57, 1")
        a("s_mov_b32 vcc_hi, 0")
    a(f"v_mov_b32 v{C1}, 1")
    a(f"v_and_b32 v{MWR}, 15, v0")
    a(f"v_lshlrev_b32 v{MWR}, 4, v{MWR}")
    a(f"v_lshl_add_u32 v{MWR}, v{WAVE}, 2, v{MWR}")
    a(f"v_lshrrev_b32 v{FROW}, 5, v0")
    a(f"v_lshlrev_b32 v{FROW}, 4, v{FROW}")
    a(f"v_and_b32 v{OADR}, 7, v0")
    a(f"v_mul_u32_u24 v{OADR}, 528, v{OADR}")
    a(f"v_lshl_add_u32 v{OADR}, v{WAVE}, 12, v{OADR}")
    a(f"v_bfe_u32 v{X0}, v0, 4, 2")
    a(f"v_lshl_add_u32 v{OADR}, v{X0}, 7, v{OADR}")
    a(f"v_and_b32 v{X0}, 8, v0")
    a(f"v_lshlrev_b32 v{X0}, 3, v{X0}")
    a(f"v_xor_b32 v{OADR}, v{X0}, v{OADR}")

    items = []
    def item(lines, need=-1, cost=None, frees=None):
        if isinstance(lines, str):
            lines = [lines]
        if cost is None:
            cost = sum(10 if l.startswith("v_mfma") else 8 if l.startswith("v_exp") else 4 for l in lines)
        items.append((lines, cost, need, frees))
    def sub(fn, *args, **kw):
        b = Asm()
        fn(b, *args, **kw)
        return [l.strip() for l in b.lines]
    def flagl(off):
        return ["s_mov_b64 exec, 1", f"ds_add_u32 v{FLG}, v{C1} offset:{off}", "s_mov_b64 exec, -1"]
    def KB(j):
        return RING + 4 * (j % RN)
    for j in range(64 + 5):
        need = max(min(j, 63), 1)
        if j < 64:
            i = j % 8
            item(f"v_mfma_f32_16x16x32_bf16 {vr(T0+4*i+2,4)}, {vr(KB(j),4)}, {vr(Q0,4)}, 0", need)
        if 0 <= j - 2 < 64:
            i = (j - 2) % 8
            item(f"v_mfma_f32_16x16x32_bf16 {vr(T0+4*i,4)}, {vr(KB(j-2),4)}, {vr(Q0+4,4)}, {vr(T0+4*i,4)}", need, frees=j - 2)
        jj = j - 5
        if 0 <= jj < 64:
            i = jj % 8
            item(f"v_add_f32_dpp v{S0+jj}, v{T0+4*i+3}, v{T0+4*i+2} row_ror:8 row_mask:0xf bank_mask:0xf", need)
            if jj == 1:
                item(f"v_max_f32 v{M}, v{S0}, v{S0+1}", need)
            elif jj % 2 == 1:
                item(f"v_max3_f32 v{M}, v{S0+jj-1}, v{S0+jj}, v{M}", need)
        if j == W + 2:
            item(["s_cmp_eq_u32 s69, 64", "s_cbranch_scc0 L_notree", ";SKIP_BEGIN",
                  f"v_mfma_f32_16x16x32_bf16 {vr(W0+2,4)}, {vr(KT,4)}, {vr(Q0,4)}, 0",
                  f"v_mfma_f32_16x16x32_bf16 {vr(W0,4)}, {vr(KT,4)}, {vr(Q0+4,4)}, {vr(W0,4)}",
                  f"v_and_b32 v{X0}, 15, v0", f"v_lshlrev_b32 v{X0}, 2, v{X0}",
                  f"v_add_f32_dpp v{X1}, v{W0+3}, v{W0+2} row_ror:8 row_mask:0xf bank_mask:0xf",
                  f"ds_write_b32 v{X0}, v{X1} offset:{LT}", ";SKIP_END", "L_notree:"], need, cost=10)
    if o["stamp"] or o["amp"]:
        item(sub(st, o, 3), 63)
    xl = [l for l in sub(xlane_sum_all, [M], X0, [16, 32], op="v_max_f32") if not l.startswith("s_nop")]
    item(xl, 63)
    item([f"v_mov_b32 v{ONE+r}, 0x3f803f80" for r in range(4)] + [f"v_mul_f32 v{M}, s68, v{M}",
          f"ds_write_b32 v{MWR}, v{M} offset:{LM}"], 63)
    for t in range(8):
        for i in range(8):
            item(f"v_fma_f32 v{S0+8*t+i}, v{S0+8*t+i}, s68, -v{M}", 63)
        for i in range(8):
            item(f"v_exp_f32 v{S0+8*t+i}, v{S0+8*t+i}", 63)
        if t > 0:
            for k in range(4 * t - 4, 4 * t):
                item(f"v_cvt_pk_bf16_f32 v{S0+k}, v{S0+2*k}, v{S0+2*k+1}", 63)
        if t > 1:
            c = "0" if t == 2 else vr(L0, 4)
            item(f"v_mfma_f32_16x16x32_bf16 {vr(L0,4)}, {vr(ONE,4)}, {vr(S0+4*(t-2),4)}, {c}", 63)
    for k in range(28, 32):
        item(f"v_cvt_pk_bf16_f32 v{S0+k}, v{S0+2*k}, v{S0+2*k+1}", 63)
    item(f"v_mfma_f32_16x16x32_bf16 {vr(L0,4)}, {vr(ONE,4)}, {vr(S0+24,4)}, {vr(L0,4)}", 63)
    item(f"v_mfma_f32_16x16x32_bf16 {vr(L0,4)}, {vr(ONE,4)}, {vr(S0+28,4)}, {vr(L0,4)}", 63)
    item([f"v_lshlrev_b32 v{X1}, 4, v0", f"ds_write_b32 v{MWR}, v{L0} offset:{LL}"] + flagl(F_ML), 63, cost=60)
    if o["stamp"] or o["amp"]:
        item(sub(st, o, 4), 63)
    for t in range(8):
        if t == o["pollat"] or t == 7:
            item(flagl(F_PROG), 63 + 8 * t)
        def mf(j):
            c = "0" if t == 0 else vr(O0 + 4 * j, 4)
            return f"v_mfma_f32_16x16x32_bf16 {vr(O0+4*j,4)}, {vr(W0+4*j,4)}, {vr(S0+4*t,4)}, {c}"
        for m in range(4):
            n0 = 64 + 8 * t + 2 * m
            pm = {}
            for u in range(4):
                for half in range(2):
                    j = 2 * u + half
                    pm[j] = f"v_perm_b32 v{W0+4*j+m}, v{KB(n0+1)+u}, v{KB(n0)+u}, s{42+half}"
            if t == 7 and m == 3:
                order = [0, 4, 1, 5, 2, 6, 3, 7]
                ls = [pm[order[0]], pm[order[1]], pm[order[2]]]
                for x in range(8):
                    ls.append(mf(order[x]))
                    if x + 3 < 8:
                        ls.append(pm[order[x + 3]])
                item(ls, n0 + 1, frees=n0 + 1)
            else:
                item([pm[j] for j in range(8)], n0 + 1, frees=n0 + 1)
        if t < 7:
            for j in range(8):
                item(mf(j), 64 + 8 * t + 7, cost=16)
        if t == 5:
            item([f"v_xor_b32 v{S0+j}, {j<<4}, v{OADR}" for j in range(1, 4)], 64 + 8 * t + 7)
    start = len(a.lines)
    q = 0
    freed = -1
    avail = -1
    for n in range(W, 128):
        assert n - RN <= freed, (n, freed)
        we = o["we"]
        if we and n < 128 - o["sprint"] and (o["wfrac"] == 0 or n % o["wfrac"] != 0):
            a(f"s_cbranch_vccnz L_th{n}")
            a(f"s_waitcnt vmcnt({we-1})")
            a(f"L_th{n}:")
        wn = W
        if o["wpat"] != "" and n < 128 - o["sprint"]:
            pat = str(o["wpat"])
            wn = int(pat[n % len(pat)])
        a(f"s_waitcnt vmcnt({wn-1})")
        load(n)
        avail = max(avail, n - wn)
        budget = o["budget"]
        while q < len(items) and items[q][2] <= avail and budget > 0:
            for l in items[q][0]:
                a(l)
            budget -= items[q][1]
            if items[q][3] is not None:
                freed = items[q][3]
            q += 1
    while q < len(items):
        if items[q][2] > avail:
            avail = items[q][2]
            a(f"s_waitcnt vmcnt({127-avail})")
        for l in items[q][0]:
            a(l)
        q += 1
    st(a, o, 5)
    for j in range(4):
        for r in range(4):
            a(f"v_mov_b32_dpp v{O0+4*j+r}, v{O0+4*(j+4)+r} row_shr:8 row_mask:0xf bank_mask:0xc")
        a(f"ds_write_b128 v{OADR if j == 0 else S0+j}, {vr(O0+4*j,4)}")
    a.lines[start:] = hz.fix(a.lines[start:])
    a("s_waitcnt lgkmcnt(0)")
    a("s_barrier")
    OR, FR = RING, RING + 16
    a(f"ds_read_b128 {vr(FR,4)}, v{FROW} offset:{LF}")
    for w in range(4):
        a(f"ds_read_b128 {vr(OR+4*w,4)}, v{X1} offset:{4096*w}")
    a(f"ds_read_b32 v{X0}, v{FLG} offset:{F_MODE}")
    fine = not (o["stamp"] or o["amp"])
    for w in range(4):
        a(f"s_waitcnt lgkmcnt({4-w})" if fine else "s_waitcnt lgkmcnt(0)")
        for r in range(4):
            if w == 0:
                a(f"v_mul_f32 v{OR+r}, v{FR}, v{OR+r}")
            else:
                a(f"v_fmac_f32 v{OR+r}, v{FR+w}, v{OR+4*w+r}")
    for r in range(4):
        a(f"v_min_u32 v{OR+r}, s101, v{OR+r}")
    a(f"buffer_store_dwordx4 {vr(OR,4)}, v{STA}, s[36:39], s92 offen")
    st(a, o, 6)
    a("s_waitcnt lgkmcnt(0)")
    a(f"v_readfirstlane_b32 s94, v{X0}")
    a(f"s_add_u32 s92, s92, {PB_OFF:#x}")
    a("s_nop 1")
    a("s_cmp_eq_u32 s94, 1")
    a("s_cbranch_scc1 L_fin")
    a(f"buffer_store_dwordx4 {vr(OR,4)}, v{STA}, s[36:39], s92 offen sc1")
    a("s_waitcnt vmcnt(0)")
    for l in flagl(F_PB):
        a(l)
    a("s_branch L_fin")

    a("L_helper:")
    B = RING
    mk, stv, vt, om, Z0, OA, ox, Mx, L, FV, ROW, FA = (B + i for i in range(2, 14))
    X, ML, F, O, T, Z, OB, MLA, VTA, BP, X2 = B + 16, B + 32, B + 36, B + 44, B + 48, B + 56, B + 60, B + 64, B + 65, B + 66, B + 72
    a("s_load_dwordx16 s[4:19], s[0:1], 0")
    a("s_load_dwordx2 s[20:21], s[0:1], 64")
    st(a, o, 0)
    ids(a, o)
    a(f"v_lshrrev_b32 v{WAVE}, 6, v0")
    a(f"v_and_b32 v{LANE}, 63, v0")
    a("s_lshr_b32 s40, s23, 2")
    a("s_and_b32 s41, s23, 3")
    a("s_lshl_b32 s100, s22, 5")
    a("s_lshl_b32 s65, s22, 12")
    a(f"s_add_u32 s65, s65, {ML_OFF:#x}")
    a("s_lshl_b32 s95, s23, 7")
    a("s_add_u32 s93, s65, s95")
    a("s_lshl_b32 s95, s40, 4")
    a("s_add_u32 s65, s65, s95")
    a("s_lshl_b32 s60, s22, 3")
    a("s_add_u32 s60, s60, s40")
    a("s_lshl_b32 s60, s60, 8")
    a("s_lshl_b32 s61, s22, 8")
    a("s_lshl_b32 s67, s41, 6")
    a("s_add_u32 s63, s61, s67")
    a("s_add_u32 s66, s60, s67")
    a("s_lshl_b32 s64, s22, 17")
    a("s_lshl_b32 s67, s23, 12")
    a("s_add_u32 s64, s64, s67")
    a("s_lshr_b32 s62, s22, 2")
    a("s_lshl_b32 s62, s62, 4")
    for d, n in ((36, WS_BYTES), (44, 0x4000), (96, 256)):
        a(f"s_mov_b32 s{d+2}, {n:#x}")
        a(f"s_mov_b32 s{d+3}, 0x20000")
    a(f"v_mov_b32 v{Z0}, 0")
    a(f"v_and_b32 v{X0}, 7, v{LANE}")
    a(f"v_lshlrev_b32 v{MLA}, 4, v{X0}")
    a(f"v_xor_b32 v{OA}, s40, v{X0}")
    a(f"v_lshlrev_b32 v{OA}, 1, v{OA}")
    a(f"v_bfe_u32 v{X1}, v{LANE}, 3, 2")
    a(f"v_lshl_add_u32 v{VTA}, v{X1}, 4, v{OA}")
    a(f"v_bfe_u32 v{X1}, v{LANE}, 4, 1")
    a(f"v_lshl_add_u32 v{OA}, v{X1}, 5, v{OA}")
    a(f"v_bfe_u32 v{X1}, v{LANE}, 5, 1")
    a(f"v_lshl_add_u32 v{OA}, v{X1}, 4, v{OA}")
    a(f"v_lshrrev_b32 v{X1}, 3, v{LANE}")
    a(f"v_lshlrev_b32 v{ox}, 9, v{X1}")
    a(f"v_lshl_add_u32 v{ox}, v{X0}, 4, v{ox}")
    a(f"v_lshlrev_b32 v{BP}, 4, v{X1}")
    a(f"v_and_b32 v{om}, 31, v{LANE}")
    a(f"v_lshlrev_b32 v{om}, 7, v{om}")
    a(f"v_and_b32 v{ROW}, 15, v{LANE}")
    a(f"v_lshlrev_b32 v{ROW}, 4, v{ROW}")
    a(f"s_mov_b32 s58, {o['maxspin']}")
    a("s_getreg_b32 s57, hwreg(HW_REG_XCC_ID, 0, 4)")
    if o["fakexcc"]:
        a("s_lshr_b32 s57, s2, 3")
        a("s_and_b32 s57, s57, 1")
    a("s_waitcnt lgkmcnt(0)")
    st(a, o, 1)
    a("s_load_dword s56, s[14:15], 0")
    a("s_add_u32 s12, s12, s63")
    a("s_addc_u32 s13, s13, 0")
    a("s_load_dwordx8 s[24:31], s[12:13], 0")
    a("s_load_dwordx8 s[48:55], s[12:13], 32")
    a("s_mov_b32 s36, s20")
    a("s_mov_b32 s37, s21")
    a("s_mov_b32 s44, s16")
    a("s_mov_b32 s45, s17")
    a("s_mov_b32 s96, s18")
    a("s_mov_b32 s97, s19")
    a("s_cmp_eq_u32 s23, 0")
    a("s_cbranch_scc0 L_nolead")
    for r in range(4):
        a(f"v_mov_b32 v{Z+r}, -1")
    a(f"v_lshlrev_b32 v{FA}, 4, v{LANE}")
    a(f"v_mov_b32 v{FV}, 1")
    a("s_setprio 3")
    for k in range(4):
        a(f"buffer_store_dwordx4 {vr(Z,4)}, v{FA}, s[36:39], s93 offen offset:{1024*k} sc1")
    a("s_waitcnt vmcnt(0)")
    a("s_mov_b64 exec, 1")
    a(f"buffer_store_dword v{FV}, v{Z0}, s[96:99], s100 offen sc1")
    a("s_mov_b64 exec, -1")
    a("s_setprio 0")
    a("L_nolead:")
    a("s_waitcnt lgkmcnt(0)")
    for i in range(16):
        a(f"v_writelane_b32 v{X0}, s{24+i if i < 8 else 40+i}, {i}")
    a(f"v_and_b32 v{X1}, 0x3c, v{VTA}")
    a(f"ds_bpermute_b32 v{vt}, v{X1}, v{X0}")
    a(f"v_and_b32 v{X1}, 2, v{VTA}")
    a(f"v_lshlrev_b32 v{X1}, 3, v{X1}")
    a("s_lshr_b32 s56, s56, s62")
    a("s_lshl_b32 s56, s56, 16")
    a(f"v_sub_f32 v{mk}, 1.0, s56")
    a(f"v_mul_f32 v{mk}, {C_MASK:#x}, v{mk}")
    a("s_lshl_b32 s94, s40, 2")
    a("s_waitcnt lgkmcnt(0)")
    a(f"v_lshrrev_b32 v{vt}, v{X1}, v{vt}")
    a(f"v_lshlrev_b32 v{vt}, 16, v{vt}")
    a(f"v_mov_b32 v{VTA}, s94")
    a("s_mov_b32 s101, 0xfffffffe")

    def ldsspin(off, val, lab, out):
        a(f"{lab}:")
        a("s_sub_u32 s58, s58, 1")
        a(f"s_cbranch_scc1 {out}")
        a(f"s_sleep {o['ldssleep']}")
        a(f"ds_read_b32 v{X0}, v{FLG} offset:{off}")
        a("s_waitcnt lgkmcnt(0)")
        a(f"v_readfirstlane_b32 s94, v{X0}")
        a("s_nop 2")
        a(f"s_cmp_ge_u32 s94, {val}")
        a(f"s_cbranch_scc0 {lab}")

    def dbgword(off):
        a(f"buffer_load_dword v{FV}, v{Z0}, s[96:99], s100 offen offset:{off} sc1")
        a("s_waitcnt vmcnt(0)")
        a(f"v_readfirstlane_b32 s94, v{FV}")
        a("s_nop 2")

    a("L_lead:")
    a("s_sub_u32 s58, s58, 1")
    a("s_cbranch_scc1 L_giveup")
    a(f"s_sleep {o['leadsleep']}")
    a("s_setprio 3")
    dbgword(0)
    a("s_setprio 0")
    a("s_cmp_eq_u32 s94, 0")
    a("s_cbranch_scc1 L_lead")
    st(a, o, 2)
    ldsspin(F_ML, 4, "L_sp1", "L_giveup")
    a(f"ds_read_b128 {vr(T,4)}, v{ROW} offset:{LM}")
    a(f"ds_read_b128 {vr(T+4,4)}, v{ROW} offset:{LL}")
    a(f"ds_read_b32 v{stv}, v{VTA} offset:{LT}")
    a("s_waitcnt lgkmcnt(0)")
    a(f"v_max3_f32 v{Z}, v{T}, v{T+1}, v{T+2}")
    a(f"v_max_f32 v{Z}, v{T+3}, v{Z}")
    for w in range(4):
        a(f"v_sub_f32 v{T+w}, v{T+w}, v{Z}")
    for w in range(4):
        a(f"v_exp_f32 v{T+w}, v{T+w}")
    a(f"v_mov_b32 v{Z+2}, s57")
    a(f"v_mov_b32 v{Z+3}, 0")
    a(f"ds_write_b128 v{ROW}, {vr(T,4)} offset:{LF}")
    a(f"v_mul_f32 v{Z+1}, v{T}, v{T+4}")
    for w in range(1, 4):
        a(f"v_fmac_f32 v{Z+1}, v{T+w}, v{T+4+w}")
    a(f"v_min_u32 v{Z}, s101, v{Z}")
    a(f"v_min_u32 v{Z+1}, s101, v{Z+1}")
    a("s_setprio 3")
    a("s_mov_b64 exec, 0xff")
    a(f"buffer_store_dwordx4 {vr(Z,4)}, v{MLA}, s[36:39], s93 offen sc1")
    a("s_mov_b64 exec, -1")
    a("s_setprio 0")
    a(f"v_mul_f32 v{stv}, {C_SC:#x}, v{stv}")
    a(f"v_add_f32 v{stv}, v{stv}, v{mk}")
    st(a, o, 3)
    ldsspin(F_PROG, 1, "L_sp2", "L_giveup")
    st(a, o, 4)
    a("s_setprio 3")
    a("s_mov_b32 s88, 0")
    a("L_mlpoll:")
    a("s_sub_u32 s58, s58, 1")
    a("s_cbranch_scc1 L_giveup2")
    a(f"buffer_load_dwordx4 {vr(ML,4)}, v{om}, s[36:39], s65 offen sc1")
    a("s_waitcnt vmcnt(0)")
    a(f"v_max3_u32 v{X0}, v{ML}, v{ML+1}, v{ML+2}")
    a(f"v_cmp_eq_u32 vcc, -1, v{X0}")
    a("s_cbranch_vccz L_mlgot")
    a("s_cmp_eq_u32 s88, 0")
    a("s_cbranch_scc0 L_mlpoll")
    a(f"s_sleep {o['mlsleep']}")
    a(f"ds_read_b32 v{X0}, v{FLG} offset:{F_PROG}")
    a("s_waitcnt lgkmcnt(0)")
    a(f"v_readfirstlane_b32 s95, v{X0}")
    a("s_nop 2")
    a("s_cmp_le_u32 s95, 4")
    a("s_cbranch_scc1 L_mlpoll")
    a("s_barrier")
    a("s_mov_b32 s88, 1")
    a("s_branch L_mlpoll")
    a("L_mlgot:")
    a(f"v_cmp_ne_u32 vcc, s57, v{ML+2}")
    a(f"v_max_f32 v{Mx}, v{ML}, v{stv}")
    a("s_nop 0")
    a("s_cmp_eq_u64 vcc, 0")
    a("s_cselect_b32 s56, 1, 0")
    a(f"v_mov_b32 v{X1}, s56")
    a(f"ds_write_b32 v{FLG}, v{X1} offset:{F_MODE}")
    xlane_sum_all(a, [Mx], T, [1, 2, 4, 8, 16], op="v_max_f32")
    a(f"v_sub_f32 v{F+5}, v{ML}, v{Mx}")
    a(f"v_sub_f32 v{F+4}, v{stv}, v{Mx}")
    a(f"v_exp_f32 v{F+5}, v{F+5}")
    a(f"v_exp_f32 v{F+4}, v{F+4}")
    a("s_nop 0")
    a(f"v_mul_f32 v{L}, v{F+5}, v{ML+1}")
    a("s_nop 1")
    xlane_sum_all(a, [L], T, [1, 2, 4, 8, 16])
    a(f"v_add_f32 v{L}, v{L}, v{F+4}")
    a(f"v_rcp_f32 v{L}, v{L}")
    a("s_nop 0")
    a(f"v_mul_f32 v{F+5}, v{F+5}, v{L}")
    a(f"v_mul_f32 v{F+4}, v{F+4}, v{L}")
    for k in range(4):
        a(f"ds_bpermute_b32 v{F+k}, v{BP}, v{F+5} offset:{4*k}")
    a(f"v_mul_f32 v{X0}, v{F+4}, v{vt}")
    for r in range(4):
        a(f"v_mov_b32 v{OB+r}, 0")
    for r in range(4):
        a(f"s_mov_b64 exec, {0xff << (8*r):#x}") if r < 3 else a("s_mov_b32 exec_lo, 0xff000000")
        a(f"v_mov_b32 v{OB+r}, v{X0}")
    a("s_mov_b64 exec, -1")
    a("s_waitcnt lgkmcnt(0)")
    st(a, o, 5)
    a("s_cmp_eq_u32 s56, 1")
    a("s_cbranch_scc1 L_poll")
    a("s_cmp_eq_u32 s88, 0")
    a("s_cbranch_scc0 L_postbar")
    a("s_barrier")
    a("s_mov_b32 s88, 1")
    a("L_postbar:")
    ldsspin(F_PB, 4, "L_sp4", "L_fin")
    a(f"v_mov_b32 v{X0}, 1")
    a("s_mov_b64 exec, 1")
    a(f"buffer_atomic_add v{X0}, v{Z0}, s[96:99], s100 offen offset:4 sc1")
    a("s_mov_b64 exec, -1")
    a("L_c2:")
    a("s_sub_u32 s58, s58, 1")
    a("s_cbranch_scc1 L_fin")
    dbgword(4)
    a("s_cmp_ge_u32 s94, 32")
    a("s_cbranch_scc0 L_c2")
    a(f"s_add_u32 s64, s64, {PB_OFF:#x}")

    def pollld(Xb):
        for k in range(4):
            a(f"buffer_load_dwordx4 {vr(Xb+4*k,4)}, v{ox}, s[36:39], s64 offen offset:{128*k} sc1")
    def pollmath(Xb):
        b = Asm()
        sent_check(b, Xb, 16, X0, X1)
        for r in range(4):
            b(f"v_fma_f32 v{O+r}, v{F}, v{Xb+r}, v{OB+r}")
        for k in range(1, 4):
            for r in range(4):
                b(f"v_fmac_f32 v{O+r}, v{F+k}, v{Xb+4*k+r}")
        b(f"v_permlane32_swap_b32 v{O}, v{O+1}")
        b(f"v_permlane32_swap_b32 v{O+2}, v{O+3}")
        b(f"v_add_f32 v{O}, v{O}, v{O+1}")
        b(f"v_add_f32 v{O+2}, v{O+2}, v{O+3}")
        b(f"v_permlane16_swap_b32 v{O}, v{O+2}")
        b(f"v_add_f32 v{O}, v{O}, v{O+2}")
        b(f"v_add_f32_dpp v{O}, v{O}, v{O} row_ror:8 row_mask:0xf bank_mask:0xf")
        b(f"v_cvt_pk_bf16_f32 v{O}, v{O}, v{O}")
        a.lines += hz.fix(b.lines)
    a("L_poll:")
    pollld(X)
    a("L_poll2:")
    a("s_sub_u32 s58, s58, 1")
    a("s_cbranch_scc1 L_giveup2")
    pollld(X2)
    a("s_waitcnt vmcnt(4)")
    pollmath(X)
    a("s_cbranch_vccz L_done")
    pollld(X)
    a("s_waitcnt vmcnt(4)")
    pollmath(X2)
    a("s_cbranch_vccz L_done")
    a("s_cmp_eq_u32 s88, 0")
    a("s_cbranch_scc0 L_poll2")
    a("s_waitcnt vmcnt(0)")
    a("s_barrier")
    a("s_mov_b32 s88, 1")
    st(a, o, 6)
    a("s_branch L_poll")
    a("L_done:")
    a(f"buffer_store_short v{O}, v{OA}, s[44:47], s66 offen {o['outsc']}")
    a("L_giveup2:")
    a("s_cmp_eq_u32 s88, 0")
    a("s_cbranch_scc0 L_fin")
    a("L_giveup:")
    a("s_barrier")
    a("L_fin:")
    if o["stamp"]:
        st(a, o, 7)
        dump_stamps(a, o, 8, WAVE, nwaves=NW)
    if o["amp"]:
        st(a, o, 7)
        a("s_waitcnt lgkmcnt(0)")
        j = o["amp"]
        a(f"s_sub_u32 s60, s{70+2*j}, s70")
        a(f"s_mul_i32 s60, s60, {o['mult']}")
        a(f"s_add_u32 s60, s60, {o['base']}")
        if not o["amph"]:
            a("s_cmp_ge_u32 s69, 256")
            a("s_cbranch_scc1 L_end")
        a("L_spin:")
        a("s_sleep 2")
        a("s_memrealtime s[86:87]")
        a("s_waitcnt lgkmcnt(0)")
        a("s_sub_u32 s86, s86, s70")
        a("s_cmp_lt_u32 s86, s60")
        a("s_cbranch_scc1 L_spin")
    a("L_end:")
    a("s_endpgm")


def gen9(o):
    a = Asm()
    main = NAME + "_kernel"
    a.lines.append((HEADER + f"; @launch grid=(256,1,1) block=(320,1,1) lds=17408\n").rstrip())
    a('.amdgcn_target "amdgcn-amd-amdhsa--gfx950"')
    a(".text")
    a(f".globl {main}")
    kernel(a, o, main)
    a('.section .rodata,"a"')
    a(".p2align 6")
    kd(a, main, 256)
    return a.text()


DEF = dict(nt="nt", map=1, stamp=0, amp=0, amph=0, mult=0, base=6000, maxspin=200000, mlsleep=16, ldssleep=4,
           pollat=3, fakexcc=0, w=7, budget=160, outsc="", we=0, wfrac=0, sprint=12, fastmask=0xaa, leadsleep=100, wpat='')
if __name__ == "__main__":
    o = dict(DEF)
    for kv in sys.argv[2:]:
        k, v = kv.split("=")
        assert k in o, k
        o[k] = int(v, 0) if v.lstrip("-").replace("0x", "").isalnum() and v.lstrip("-")[0].isdigit() else v.replace("+", " ")
    open(sys.argv[1], "w").write(gen9(o))
```

```python
import sys
from gen import Asm, vr, srd, HEADER, NAME, C_SC, C_MASK, xlane_sum_all, dump_stamps, kd, ids
from gen4 import sent_check
import hz

NW = 5
PO_BYTES = 8 * 131072
PB_OFF = PO_BYTES
ML_OFF = 2 * PO_BYTES
WS_BYTES = ML_OFF + 8 * 4096
LM, LL, LF, LT, LFLAG = 0x4000, 0x4100, 0x4200, 0x4300, 0x4380
F_ML, F_PROG, F_MODE, F_PB = 0, 4, 8, 12


def st(a, o, idx):
    if o["stamp"] or o["amp"]:
        a(f"s_memrealtime s[{70+2*idx}:{71+2*idx}]")


def kernel(a, o, label):
    nt = o["nt"]
    W = o["w"]
    RN = 32
    VK, VV, OADR, M, X0, X1, FROW, MWR, STA, WAVE, LANE, FLG, C1 = range(1, 14)
    Q0 = 16
    ONE = 16
    RING = 24
    S0 = 152
    W0 = S0 + 32
    T0 = 216
    O0, L0 = 216, 248
    KT = 252

    a(".p2align 8")
    a(f".type {label},@function")
    a(f"{label}:")
    a("s_load_dwordx16 s[4:19], s[0:1], 0")
    a("s_load_dwordx2 s[20:21], s[0:1], 64")
    a("s_cmp_ge_u32 s2, 256")
    a("s_cbranch_scc1 L_end")
    a("v_readfirstlane_b32 s69, v0")
    a(f"v_mov_b32 v{FLG}, {LFLAG:#x}")
    a("v_mov_b32 v24, 0")
    a("v_mov_b32 v25, 0")
    a("s_cmp_ge_u32 s69, 256")
    a("s_cbranch_scc0 L_worker")
    a(f"ds_write_b64 v{FLG}, v[24:25]")
    a(f"ds_write_b64 v{FLG}, v[24:25] offset:8")
    a("s_waitcnt lgkmcnt(0)")
    a("s_barrier")
    a("s_branch L_helper")
    a("L_worker:")
    st(a, o, 0)
    ids(a, o)
    a(f"v_lshrrev_b32 v{WAVE}, 6, v0")
    a(f"v_and_b32 v{LANE}, 63, v0")
    a(f"v_lshlrev_b32 v{VV}, 4, v{LANE}")
    a(f"v_lshl_add_u32 v{VV}, v{WAVE}, 13, v{VV}")
    a(f"v_bfe_u32 v{X0}, v0, 4, 2")
    a(f"v_and_b32 v{X1}, 3, v0")
    a(f"v_lshlrev_b32 v{M}, 4, v{X1}")
    a(f"v_lshl_add_u32 v{M}, v{X0}, 6, v{M}")
    a(f"v_bfe_u32 v{X1}, v0, 2, 2")
    a(f"v_lshl_add_u32 v{VK}, v{X1}, 8, v{M}")
    a(f"v_lshl_add_u32 v{VK}, v{WAVE}, 13, v{VK}")
    a(f"v_and_b32 v{X1}, 7, v0")
    a(f"v_lshlrev_b32 v{STA}, 4, v{X1}")
    a(f"v_lshlrev_b32 v{X1}, 8, v{X1}")
    a(f"v_lshl_add_u32 v{X1}, v{X0}, 6, v{X1}")
    a(f"v_bfe_u32 v{X0}, v0, 3, 1")
    a(f"v_lshl_add_u32 v{X1}, v{X0}, 4, v{X1}")
    a(f"v_lshrrev_b32 v{X0}, 3, v0")
    a(f"v_lshl_add_u32 v{STA}, v{X0}, 12, v{STA}")
    a("s_lshl_b32 s3, s22, 23")
    a("s_lshl_b32 s40, s23, 18")
    a("s_add_u32 s3, s3, s40")
    a("s_lshl_b32 s41, s22, 11")
    a("s_mov_b32 s26, 0x40000")
    a("s_mov_b32 s27, 0x20000")
    a("s_mov_b32 s34, 0x4000")
    a("s_mov_b32 s35, 0x20000")
    a("s_movk_i32 s91, 0x1000")
    a("s_waitcnt lgkmcnt(0)")
    st(a, o, 1)
    a("s_add_u32 s24, s6, s3")
    a("s_addc_u32 s25, s7, 0")

    def load(n):
        strm, t, i = n >> 6, (n >> 3) & 7, n & 7
        buf = RING + 4 * (n % RN)
        voff, sb = (VK, 24) if strm == 0 else (VV, 28)
        if t == 0:
            so = "0" if i < 4 else "s91"
        else:
            if i % 4 == 0:
                a(f"s_mov_b32 s90, {t*32768 + (i>>2)*4096:#x}")
            so = "s90"
        a(f"buffer_load_dwordx4 {vr(buf,4)}, v{voff}, s[{sb}:{sb+3}], {so} offen offset:{(i&3)*1024} {nt}")

    load(0)
    a("s_mov_b32 s32, s4")
    a("s_mov_b32 s33, s5")
    a(f"buffer_load_dwordx4 {vr(Q0,4)}, v{X1}, s[32:35], s41 offen")
    a(f"buffer_load_dwordx4 {vr(Q0+4,4)}, v{X1}, s[32:35], s41 offen offset:32")
    for n in range(1, W):
        load(n)
    st(a, o, 2)
    a("s_mov_b32 s36, s20")
    a("s_mov_b32 s37, s21")
    a(f"s_mov_b32 s38, {WS_BYTES:#x}")
    a("s_mov_b32 s39, 0x20000")
    a("s_lshl_b32 s92, s22, 17")
    a("s_lshl_b32 s95, s23, 7")
    a("s_add_u32 s92, s92, s95")
    for r in range(4):
        a(f"v_mov_b32 v{L0+r}, -1")
    a(f"buffer_store_dwordx4 {vr(L0,4)}, v{STA}, s[36:39], s92 offen")
    a("s_cmp_eq_u32 s69, 64")
    a("s_cbranch_scc0 L_side_done")
    srd(a, 48, 10, 2048)
    a("s_lshl_b32 s61, s22, 8")
    a(f"buffer_load_dwordx4 {vr(KT,4)}, v{M}, s[48:51], s61 offen")
    a("L_side_done:")
    a("s_add_u32 s28, s8, s3")
    a("s_addc_u32 s29, s9, 0")
    a("s_mov_b32 s30, 0x40000")
    a("s_mov_b32 s31, 0x20000")
    a("s_mov_b32 s101, 0xfffffffe")
    a(f"s_mov_b32 s68, {C_SC:#x}")
    a("s_mov_b32 s42, 0x05040100")
    a("s_mov_b32 s43, 0x07060302")
    if o["we"]:
        a("s_getreg_b32 s57, hwreg(HW_REG_XCC_ID, 0, 3)")
        a(f"s_lshr_b32 s57, {o['fastmask']:#x}, s57")
        a("s_and_b32 vcc_lo, s57, 1")
        a("s_mov_b32 vcc_hi, 0")
    a(f"v_mov_b32 v{C1}, 1")
    a(f"v_and_b32 v{MWR}, 15, v0")
    a(f"v_lshlrev_b32 v{MWR}, 4, v{MWR}")
    a(f"v_lshl_add_u32 v{MWR}, v{WAVE}, 2, v{MWR}")
    a(f"v_lshrrev_b32 v{FROW}, 5, v0")
    a(f"v_lshlrev_b32 v{FROW}, 4, v{FROW}")
    a(f"v_and_b32 v{OADR}, 7, v0")
    a(f"v_mul_u32_u24 v{OADR}, 528, v{OADR}")
    a(f"v_lshl_add_u32 v{OADR}, v{WAVE}, 12, v{OADR}")
    a(f"v_bfe_u32 v{X0}, v0, 4, 2")
    a(f"v_lshl_add_u32 v{OADR}, v{X0}, 7, v{OADR}")
    a(f"v_and_b32 v{X0}, 8, v0")
    a(f"v_lshlrev_b32 v{X0}, 3, v{X0}")
    a(f"v_xor_b32 v{OADR}, v{X0}, v{OADR}")

    a("s_barrier")
    items = []
    def item(lines, need=-1, cost=None, frees=None):
        if isinstance(lines, str):
            lines = [lines]
        if cost is None:
            cost = sum(10 if l.startswith("v_mfma") else 8 if l.startswith("v_exp") else 4 for l in lines)
        items.append((lines, cost, need, frees))
    def sub(fn, *args, **kw):
        b = Asm()
        fn(b, *args, **kw)
        return [l.strip() for l in b.lines]
    def flagl(off):
        return ["s_mov_b64 exec, 1", f"ds_add_u32 v{FLG}, v{C1} offset:{off}", "s_mov_b64 exec, -1"]
    def KB(j):
        return RING + 4 * (j % RN)
    for j in range(64 + 5):
        need = max(min(j, 63), 1)
        if j < 64:
            i = j % 8
            item(f"v_mfma_f32_16x16x32_bf16 {vr(T0+4*i+2,4)}, {vr(KB(j),4)}, {vr(Q0,4)}, 0", need)
        if 0 <= j - 2 < 64:
            i = (j - 2) % 8
            item(f"v_mfma_f32_16x16x32_bf16 {vr(T0+4*i,4)}, {vr(KB(j-2),4)}, {vr(Q0+4,4)}, {vr(T0+4*i,4)}", need, frees=j - 2)
        jj = j - 5
        if 0 <= jj < 64:
            i = jj % 8
            item(f"v_add_f32_dpp v{S0+jj}, v{T0+4*i+3}, v{T0+4*i+2} row_ror:8 row_mask:0xf bank_mask:0xf", need)
            if jj == 1:
                item(f"v_max_f32 v{M}, v{S0}, v{S0+1}", need)
            elif jj % 2 == 1:
                item(f"v_max3_f32 v{M}, v{S0+jj-1}, v{S0+jj}, v{M}", need)
        if j == W + 2:
            item(["s_cmp_eq_u32 s69, 64", "s_cbranch_scc0 L_notree", ";SKIP_BEGIN",
                  f"v_mfma_f32_16x16x32_bf16 {vr(W0+2,4)}, {vr(KT,4)}, {vr(Q0,4)}, 0",
                  f"v_mfma_f32_16x16x32_bf16 {vr(W0,4)}, {vr(KT,4)}, {vr(Q0+4,4)}, {vr(W0,4)}",
                  f"v_and_b32 v{X0}, 15, v0", f"v_lshlrev_b32 v{X0}, 2, v{X0}",
                  f"v_add_f32_dpp v{X1}, v{W0+3}, v{W0+2} row_ror:8 row_mask:0xf bank_mask:0xf",
                  f"ds_write_b32 v{X0}, v{X1} offset:{LT}", ";SKIP_END", "L_notree:"], need, cost=10)
    if o["stamp"] or o["amp"]:
        item(sub(st, o, 3), 63)
    xl = [l for l in sub(xlane_sum_all, [M], X0, [16, 32], op="v_max_f32") if not l.startswith("s_nop")]
    item(xl, 63)
    item([f"v_mov_b32 v{ONE+r}, 0x3f803f80" for r in range(4)] + [f"v_mul_f32 v{M}, s68, v{M}",
          f"ds_write_b32 v{MWR}, v{M} offset:{LM}"], 63)
    for t in range(8):
        for i in range(8):
            item(f"v_fma_f32 v{S0+8*t+i}, v{S0+8*t+i}, s68, -v{M}", 63)
        for i in range(8):
            item(f"v_exp_f32 v{S0+8*t+i}, v{S0+8*t+i}", 63)
        if t > 0:
            for k in range(4 * t - 4, 4 * t):
                item(f"v_cvt_pk_bf16_f32 v{S0+k}, v{S0+2*k}, v{S0+2*k+1}", 63)
        if t > 1:
            c = "0" if t == 2 else vr(L0, 4)
            item(f"v_mfma_f32_16x16x32_bf16 {vr(L0,4)}, {vr(ONE,4)}, {vr(S0+4*(t-2),4)}, {c}", 63)
    for k in range(28, 32):
        item(f"v_cvt_pk_bf16_f32 v{S0+k}, v{S0+2*k}, v{S0+2*k+1}", 63)
    item(f"v_mfma_f32_16x16x32_bf16 {vr(L0,4)}, {vr(ONE,4)}, {vr(S0+24,4)}, {vr(L0,4)}", 63)
    item(f"v_mfma_f32_16x16x32_bf16 {vr(L0,4)}, {vr(ONE,4)}, {vr(S0+28,4)}, {vr(L0,4)}", 63)
    item([f"v_lshlrev_b32 v{X1}, 4, v0", f"ds_write_b32 v{MWR}, v{L0} offset:{LL}"] + flagl(F_ML), 63, cost=60)
    if o["stamp"] or o["amp"]:
        item(sub(st, o, 4), 63)
    for t in range(8):
        if t == o["pollat"] or t == 7:
            item(flagl(F_PROG), 63 + 8 * t)
        def mf(j):
            c = "0" if t == 0 else vr(O0 + 4 * j, 4)
            return f"v_mfma_f32_16x16x32_bf16 {vr(O0+4*j,4)}, {vr(W0+4*j,4)}, {vr(S0+4*t,4)}, {c}"
        for m in range(4):
            n0 = 64 + 8 * t + 2 * m
            pm = {}
            for u in range(4):
                for half in range(2):
                    j = 2 * u + half
                    pm[j] = f"v_perm_b32 v{W0+4*j+m}, v{KB(n0+1)+u}, v{KB(n0)+u}, s{42+half}"
            if t == 7 and m == 3:
                order = [0, 4, 1, 5, 2, 6, 3, 7]
                ls = [pm[order[0]], pm[order[1]], pm[order[2]]]
                for x in range(8):
                    ls.append(mf(order[x]))
                    if x + 3 < 8:
                        ls.append(pm[order[x + 3]])
                item(ls, n0 + 1, frees=n0 + 1)
            else:
                item([pm[j] for j in range(8)], n0 + 1, frees=n0 + 1)
        if t < 7:
            for j in range(8):
                item(mf(j), 64 + 8 * t + 7, cost=16)
        if t == 5:
            item([f"v_xor_b32 v{S0+j}, {j<<4}, v{OADR}" for j in range(1, 4)], 64 + 8 * t + 7)
    start = len(a.lines)
    q = 0
    freed = -1
    avail = -1
    for n in range(W, 128):
        assert n - RN <= freed, (n, freed)
        we = o["we"]
        if we and n < 128 - o["sprint"] and (o["wfrac"] == 0 or n % o["wfrac"] != 0):
            a(f"s_cbranch_vccnz L_th{n}")
            a(f"s_waitcnt vmcnt({we-1})")
            a(f"L_th{n}:")
        wn = W
        if o["wpat"] != "" and n < 128 - o["sprint"]:
            pat = str(o["wpat"])
            wn = int(pat[n % len(pat)])
        a(f"s_waitcnt vmcnt({wn-1})")
        load(n)
        avail = max(avail, n - wn)
        budget = o["budget"]
        while q < len(items) and items[q][2] <= avail and budget > 0:
            for l in items[q][0]:
                a(l)
            budget -= items[q][1]
            if items[q][3] is not None:
                freed = items[q][3]
            q += 1
    while q < len(items):
        if items[q][2] > avail:
            avail = items[q][2]
            a(f"s_waitcnt vmcnt({127-avail})")
        for l in items[q][0]:
            a(l)
        q += 1
    st(a, o, 5)
    for j in range(4):
        for r in range(4):
            a(f"v_mov_b32_dpp v{O0+4*j+r}, v{O0+4*(j+4)+r} row_shr:8 row_mask:0xf bank_mask:0xc")
        a(f"ds_write_b128 v{OADR if j == 0 else S0+j}, {vr(O0+4*j,4)}")
    a.lines[start:] = hz.fix(a.lines[start:])
    a("s_waitcnt lgkmcnt(0)")
    a("s_barrier")
    OR, FR = RING, RING + 16
    a(f"ds_read_b128 {vr(FR,4)}, v{FROW} offset:{LF}")
    for w in range(4):
        a(f"ds_read_b128 {vr(OR+4*w,4)}, v{X1} offset:{4096*w}")
    a(f"ds_read_b32 v{X0}, v{FLG} offset:{F_MODE}")
    fine = not (o["stamp"] or o["amp"])
    for w in range(4):
        a(f"s_waitcnt lgkmcnt({4-w})" if fine else "s_waitcnt lgkmcnt(0)")
        for r in range(4):
            if w == 0:
                a(f"v_mul_f32 v{OR+r}, v{FR}, v{OR+r}")
            else:
                a(f"v_fmac_f32 v{OR+r}, v{FR+w}, v{OR+4*w+r}")
    for r in range(4):
        a(f"v_min_u32 v{OR+r}, s101, v{OR+r}")
    a(f"buffer_store_dwordx4 {vr(OR,4)}, v{STA}, s[36:39], s92 offen")
    st(a, o, 6)
    a("s_waitcnt lgkmcnt(0)")
    a(f"v_readfirstlane_b32 s94, v{X0}")
    a(f"s_add_u32 s92, s92, {PB_OFF:#x}")
    a("s_nop 1")
    a("s_cmp_eq_u32 s94, 1")
    a("s_cbranch_scc1 L_fin")
    a(f"buffer_store_dwordx4 {vr(OR,4)}, v{STA}, s[36:39], s92 offen sc1")
    a("s_waitcnt vmcnt(0)")
    for l in flagl(F_PB):
        a(l)
    a("s_branch L_fin")

    a("L_helper:")
    if o["x"] == 1:
        a("v_mov_b32 v24, 1")
        a(f"ds_write_b32 v{FLG}, v24 offset:{F_MODE}")
        a("s_waitcnt lgkmcnt(0)")
        a("s_endpgm")
    B = RING
    mk, stv, vt, om, Z0, OA, ox, Mx, L, FV, ROW, FA = (B + i for i in range(2, 14))
    X, ML, F, O, T, Z, OB, MLA, VTA, BP, X2 = B + 16, B + 32, B + 36, B + 44, B + 48, B + 56, B + 60, B + 64, B + 65, B + 66, B + 72
    st(a, o, 0)
    ids(a, o)
    a(f"v_lshrrev_b32 v{WAVE}, 6, v0")
    a(f"v_and_b32 v{LANE}, 63, v0")
    a("s_lshr_b32 s40, s23, 2")
    a("s_and_b32 s41, s23, 3")
    a("s_lshl_b32 s100, s22, 5")
    a("s_lshl_b32 s65, s22, 12")
    a(f"s_add_u32 s65, s65, {ML_OFF:#x}")
    a("s_lshl_b32 s95, s23, 7")
    a("s_add_u32 s93, s65, s95")
    a("s_lshl_b32 s95, s40, 4")
    a("s_add_u32 s65, s65, s95")
    a("s_lshl_b32 s60, s22, 3")
    a("s_add_u32 s60, s60, s40")
    a("s_lshl_b32 s60, s60, 8")
    a("s_lshl_b32 s61, s22, 8")
    a("s_lshl_b32 s67, s41, 6")
    a("s_add_u32 s63, s61, s67")
    a("s_add_u32 s66, s60, s67")
    a("s_lshl_b32 s64, s22, 17")
    a("s_lshl_b32 s67, s23, 12")
    a("s_add_u32 s64, s64, s67")
    a("s_lshr_b32 s62, s22, 2")
    a("s_lshl_b32 s62, s62, 4")
    for d, n in ((36, WS_BYTES), (44, 0x4000), (96, 256)):
        a(f"s_mov_b32 s{d+2}, {n:#x}")
        a(f"s_mov_b32 s{d+3}, 0x20000")
    a(f"v_mov_b32 v{Z0}, 0")
    a(f"v_and_b32 v{X0}, 7, v{LANE}")
    a(f"v_lshlrev_b32 v{MLA}, 4, v{X0}")
    a(f"v_xor_b32 v{OA}, s40, v{X0}")
    a(f"v_lshlrev_b32 v{OA}, 1, v{OA}")
    a(f"v_bfe_u32 v{X1}, v{LANE}, 3, 2")
    a(f"v_lshl_add_u32 v{VTA}, v{X1}, 4, v{OA}")
    a(f"v_bfe_u32 v{X1}, v{LANE}, 4, 1")
    a(f"v_lshl_add_u32 v{OA}, v{X1}, 5, v{OA}")
    a(f"v_bfe_u32 v{X1}, v{LANE}, 5, 1")
    a(f"v_lshl_add_u32 v{OA}, v{X1}, 4, v{OA}")
    a(f"v_lshrrev_b32 v{X1}, 3, v{LANE}")
    a(f"v_lshlrev_b32 v{ox}, 9, v{X1}")
    a(f"v_lshl_add_u32 v{ox}, v{X0}, 4, v{ox}")
    a(f"v_lshlrev_b32 v{BP}, 4, v{X1}")
    a(f"v_and_b32 v{om}, 31, v{LANE}")
    a(f"v_lshlrev_b32 v{om}, 7, v{om}")
    a(f"v_and_b32 v{ROW}, 15, v{LANE}")
    a(f"v_lshlrev_b32 v{ROW}, 4, v{ROW}")
    a(f"s_mov_b32 s58, {o['maxspin']}")
    a("s_getreg_b32 s57, hwreg(HW_REG_XCC_ID, 0, 4)")
    if o["fakexcc"]:
        a("s_lshr_b32 s57, s2, 3")
        a("s_and_b32 s57, s57, 1")
    a("s_waitcnt lgkmcnt(0)")
    st(a, o, 1)
    a("s_load_dword s56, s[14:15], 0")
    a("s_add_u32 s12, s12, s63")
    a("s_addc_u32 s13, s13, 0")
    a("s_load_dwordx8 s[24:31], s[12:13], 0")
    a("s_load_dwordx8 s[48:55], s[12:13], 32")
    a("s_mov_b32 s36, s20")
    a("s_mov_b32 s37, s21")
    a("s_mov_b32 s44, s16")
    a("s_mov_b32 s45, s17")
    a("s_mov_b32 s96, s18")
    a("s_mov_b32 s97, s19")
    a("s_cmp_eq_u32 s23, 0")
    a("s_cbranch_scc0 L_nolead")
    for r in range(4):
        a(f"v_mov_b32 v{Z+r}, -1")
    a(f"v_lshlrev_b32 v{FA}, 4, v{LANE}")
    a(f"v_mov_b32 v{FV}, 1")
    a("s_setprio 3")
    for k in range(4):
        a(f"buffer_store_dwordx4 {vr(Z,4)}, v{FA}, s[36:39], s93 offen offset:{1024*k} sc1")
    a("s_waitcnt vmcnt(0)")
    a("s_mov_b64 exec, 1")
    a(f"buffer_store_dword v{FV}, v{Z0}, s[96:99], s100 offen sc1")
    a("s_mov_b64 exec, -1")
    a("s_setprio 0")
    a("L_nolead:")
    a("s_waitcnt lgkmcnt(0)")
    for i in range(16):
        a(f"v_writelane_b32 v{X0}, s{24+i if i < 8 else 40+i}, {i}")
    a(f"v_and_b32 v{X1}, 0x3c, v{VTA}")
    a(f"ds_bpermute_b32 v{vt}, v{X1}, v{X0}")
    a(f"v_and_b32 v{X1}, 2, v{VTA}")
    a(f"v_lshlrev_b32 v{X1}, 3, v{X1}")
    a("s_lshr_b32 s56, s56, s62")
    a("s_lshl_b32 s56, s56, 16")
    a(f"v_sub_f32 v{mk}, 1.0, s56")
    a(f"v_mul_f32 v{mk}, {C_MASK:#x}, v{mk}")
    a("s_lshl_b32 s94, s40, 2")
    a("s_waitcnt lgkmcnt(0)")
    a(f"v_lshrrev_b32 v{vt}, v{X1}, v{vt}")
    a(f"v_lshlrev_b32 v{vt}, 16, v{vt}")
    a(f"v_mov_b32 v{VTA}, s94")
    a("s_mov_b32 s101, 0xfffffffe")

    def ldsspin(off, val, lab, out):
        a(f"{lab}:")
        a("s_sub_u32 s58, s58, 1")
        a(f"s_cbranch_scc1 {out}")
        a(f"s_sleep {o['ldssleep']}")
        a(f"ds_read_b32 v{X0}, v{FLG} offset:{off}")
        a("s_waitcnt lgkmcnt(0)")
        a(f"v_readfirstlane_b32 s94, v{X0}")
        a("s_nop 2")
        a(f"s_cmp_ge_u32 s94, {val}")
        a(f"s_cbranch_scc0 {lab}")

    def dbgword(off):
        a(f"buffer_load_dword v{FV}, v{Z0}, s[96:99], s100 offen offset:{off} sc1")
        a("s_waitcnt vmcnt(0)")
        a(f"v_readfirstlane_b32 s94, v{FV}")
        a("s_nop 2")

    if o["x"] == 4:
        ldsspin(F_PROG, 8, "L_spx", "L_giveup")
        a("v_mov_b32 v24, 1")
        a(f"ds_write_b32 v{FLG}, v24 offset:{F_MODE}")
        a("s_waitcnt lgkmcnt(0)")
        a("s_endpgm")
    a("L_lead:")
    a("s_sub_u32 s58, s58, 1")
    a("s_cbranch_scc1 L_giveup")
    a(f"s_sleep {o['leadsleep']}")
    a("s_setprio 3")
    dbgword(0)
    a("s_setprio 0")
    a("s_cmp_eq_u32 s94, 0")
    a("s_cbranch_scc1 L_lead")
    st(a, o, 2)
    ldsspin(F_ML, 4, "L_sp1", "L_giveup")
    a(f"ds_read_b128 {vr(T,4)}, v{ROW} offset:{LM}")
    a(f"ds_read_b128 {vr(T+4,4)}, v{ROW} offset:{LL}")
    a(f"ds_read_b32 v{stv}, v{VTA} offset:{LT}")
    a("s_waitcnt lgkmcnt(0)")
    a(f"v_max3_f32 v{Z}, v{T}, v{T+1}, v{T+2}")
    a(f"v_max_f32 v{Z}, v{T+3}, v{Z}")
    for w in range(4):
        a(f"v_sub_f32 v{T+w}, v{T+w}, v{Z}")
    for w in range(4):
        a(f"v_exp_f32 v{T+w}, v{T+w}")
    a(f"v_mov_b32 v{Z+2}, s57")
    a(f"v_mov_b32 v{Z+3}, 0")
    a(f"ds_write_b128 v{ROW}, {vr(T,4)} offset:{LF}")
    a(f"v_mul_f32 v{Z+1}, v{T}, v{T+4}")
    for w in range(1, 4):
        a(f"v_fmac_f32 v{Z+1}, v{T+w}, v{T+4+w}")
    a(f"v_min_u32 v{Z}, s101, v{Z}")
    a(f"v_min_u32 v{Z+1}, s101, v{Z+1}")
    a("s_setprio 3")
    a("s_mov_b64 exec, 0xff")
    a(f"buffer_store_dwordx4 {vr(Z,4)}, v{MLA}, s[36:39], s93 offen sc1")
    a("s_mov_b64 exec, -1")
    a("s_setprio 0")
    a(f"v_mul_f32 v{stv}, {C_SC:#x}, v{stv}")
    a(f"v_add_f32 v{stv}, v{stv}, v{mk}")
    if o["x"] == 2:
        a("v_mov_b32 v24, 1")
        a(f"ds_write_b32 v{FLG}, v24 offset:{F_MODE}")
        a("s_waitcnt lgkmcnt(0)")
        a("s_endpgm")
    st(a, o, 3)
    ldsspin(F_PROG, 1, "L_sp2", "L_giveup")
    st(a, o, 4)
    a("s_setprio 3")
    a("s_mov_b32 s88, 0")
    a("L_mlpoll:")
    a("s_sub_u32 s58, s58, 1")
    a("s_cbranch_scc1 L_giveup2")
    a(f"buffer_load_dwordx4 {vr(ML,4)}, v{om}, s[36:39], s65 offen sc1")
    a("s_waitcnt vmcnt(0)")
    a(f"v_max3_u32 v{X0}, v{ML}, v{ML+1}, v{ML+2}")
    a(f"v_cmp_eq_u32 vcc, -1, v{X0}")
    a("s_cbranch_vccz L_mlgot")
    a("s_cmp_eq_u32 s88, 0")
    a("s_cbranch_scc0 L_mlpoll")
    a(f"s_sleep {o['mlsleep']}")
    a(f"ds_read_b32 v{X0}, v{FLG} offset:{F_PROG}")
    a("s_waitcnt lgkmcnt(0)")
    a(f"v_readfirstlane_b32 s95, v{X0}")
    a("s_nop 2")
    a("s_cmp_le_u32 s95, 4")
    a("s_cbranch_scc1 L_mlpoll")
    a("s_barrier")
    a("s_mov_b32 s88, 1")
    a("s_branch L_mlpoll")
    a("L_mlgot:")
    a(f"v_cmp_ne_u32 vcc, s57, v{ML+2}")
    a(f"v_max_f32 v{Mx}, v{ML}, v{stv}")
    a("s_nop 0")
    a("s_cmp_eq_u64 vcc, 0")
    a("s_cselect_b32 s56, 1, 0")
    a(f"v_mov_b32 v{X1}, s56")
    a(f"ds_write_b32 v{FLG}, v{X1} offset:{F_MODE}")
    xlane_sum_all(a, [Mx], T, [1, 2, 4, 8, 16], op="v_max_f32")
    a(f"v_sub_f32 v{F+5}, v{ML}, v{Mx}")
    a(f"v_sub_f32 v{F+4}, v{stv}, v{Mx}")
    a(f"v_exp_f32 v{F+5}, v{F+5}")
    a(f"v_exp_f32 v{F+4}, v{F+4}")
    a("s_nop 0")
    a(f"v_mul_f32 v{L}, v{F+5}, v{ML+1}")
    a("s_nop 1")
    xlane_sum_all(a, [L], T, [1, 2, 4, 8, 16])
    a(f"v_add_f32 v{L}, v{L}, v{F+4}")
    a(f"v_rcp_f32 v{L}, v{L}")
    a("s_nop 0")
    a(f"v_mul_f32 v{F+5}, v{F+5}, v{L}")
    a(f"v_mul_f32 v{F+4}, v{F+4}, v{L}")
    for k in range(4):
        a(f"ds_bpermute_b32 v{F+k}, v{BP}, v{F+5} offset:{4*k}")
    a(f"v_mul_f32 v{X0}, v{F+4}, v{vt}")
    for r in range(4):
        a(f"v_mov_b32 v{OB+r}, 0")
    for r in range(4):
        a(f"s_mov_b64 exec, {0xff << (8*r):#x}") if r < 3 else a("s_mov_b32 exec_lo, 0xff000000")
        a(f"v_mov_b32 v{OB+r}, v{X0}")
    a("s_mov_b64 exec, -1")
    a("s_waitcnt lgkmcnt(0)")
    if o["x"] == 3:
        a("s_endpgm")
    st(a, o, 5)
    a("s_cmp_eq_u32 s56, 1")
    a("s_cbranch_scc1 L_poll")
    a("s_cmp_eq_u32 s88, 0")
    a("s_cbranch_scc0 L_postbar")
    a("s_barrier")
    a("s_mov_b32 s88, 1")
    a("L_postbar:")
    ldsspin(F_PB, 4, "L_sp4", "L_fin")
    a(f"v_mov_b32 v{X0}, 1")
    a("s_mov_b64 exec, 1")
    a(f"buffer_atomic_add v{X0}, v{Z0}, s[96:99], s100 offen offset:4 sc1")
    a("s_mov_b64 exec, -1")
    a("L_c2:")
    a("s_sub_u32 s58, s58, 1")
    a("s_cbranch_scc1 L_fin")
    dbgword(4)
    a("s_cmp_ge_u32 s94, 32")
    a("s_cbranch_scc0 L_c2")
    a(f"s_add_u32 s64, s64, {PB_OFF:#x}")

    def finalmath(b, Xb):
        for r in range(4):
            b(f"v_fma_f32 v{O+r}, v{F}, v{Xb+r}, v{OB+r}")
        for k in range(1, 4):
            for r in range(4):
                b(f"v_fmac_f32 v{O+r}, v{F+k}, v{Xb+4*k+r}")
        b(f"v_permlane32_swap_b32 v{O}, v{O+1}")
        b(f"v_permlane32_swap_b32 v{O+2}, v{O+3}")
        b(f"v_add_f32 v{O}, v{O}, v{O+1}")
        b(f"v_add_f32 v{O+2}, v{O+2}, v{O+3}")
        b(f"v_permlane16_swap_b32 v{O}, v{O+2}")
        b(f"v_add_f32 v{O}, v{O}, v{O+2}")
        b(f"v_add_f32_dpp v{O}, v{O}, v{O} row_ror:8 row_mask:0xf bank_mask:0xf")
        b(f"v_cvt_pk_bf16_f32 v{O}, v{O}, v{O}")
    if o["incr"]:
        a("L_poll:")
        for k in range(4):
            a(f"s_mov_b64 s[{24+2*k}:{25+2*k}], -1")
        a("L_poll2:")
        a("s_sub_u32 s58, s58, 1")
        a("s_cbranch_scc1 L_giveup2")
        for k in range(4):
            a(f"s_mov_b64 exec, s[{24+2*k}:{25+2*k}]")
            a(f"s_cbranch_execz L_pk{k}")
            a(f"buffer_load_dwordx4 {vr(X+4*k,4)}, v{ox}, s[36:39], s64 offen offset:{128*k} sc1")
            a(f"L_pk{k}:")
        a("s_mov_b64 exec, -1")
        a("s_waitcnt vmcnt(0)")
        b = Asm()
        for k in range(4):
            b(f"v_max3_u32 v{T+k}, v{X+4*k}, v{X+4*k+1}, v{X+4*k+2}")
        for k in range(4):
            b(f"v_max_u32 v{T+k}, v{T+k}, v{X+4*k+3}")
        for k in range(4):
            b(f"v_cmp_eq_u32 s[{24+2*k}:{25+2*k}], -1, v{T+k}")
        for r in range(4):
            b(f"v_fma_f32 v{O+r}, v{F}, v{X+r}, v{OB+r}")
        b("s_or_b64 s[32:33], s[24:25], s[26:27]")
        b("s_or_b64 s[34:35], s[28:29], s[30:31]")
        b("s_or_b64 s[32:33], s[32:33], s[34:35]")
        b("s_cselect_b32 s94, s88, 0")
        b("s_cmp_eq_u32 s94, 1")
        b("s_cbranch_scc1 L_poll2")
        c = Asm()
        finalmath(c, X)
        b.lines += c.lines[4:]
        a.lines += hz.fix(b.lines)
        a("s_cmp_eq_u64 s[32:33], 0")
        a("s_cbranch_scc1 L_done")
        a("s_barrier")
        a("s_mov_b32 s88, 1")
        st(a, o, 6)
        a("s_branch L_poll2")
    else:
        def pollld(Xb):
            for k in range(4):
                a(f"buffer_load_dwordx4 {vr(Xb+4*k,4)}, v{ox}, s[36:39], s64 offen offset:{128*k} sc1")
        def pollmath(Xb):
            b = Asm()
            sent_check(b, Xb, 16, X0, X1)
            finalmath(b, Xb)
            a.lines += hz.fix(b.lines)
        a("L_poll:")
        pollld(X)
        a("L_poll2:")
        a("s_sub_u32 s58, s58, 1")
        a("s_cbranch_scc1 L_giveup2")
        pollld(X2)
        a("s_waitcnt vmcnt(4)")
        pollmath(X)
        a("s_cbranch_vccz L_done")
        pollld(X)
        a("s_waitcnt vmcnt(4)")
        pollmath(X2)
        a("s_cbranch_vccz L_done")
        a("s_cmp_eq_u32 s88, 0")
        a("s_cbranch_scc0 L_poll2")
        a("s_waitcnt vmcnt(0)")
        a("s_barrier")
        a("s_mov_b32 s88, 1")
        st(a, o, 6)
        a("s_branch L_poll")
    a("L_done:")
    a(f"buffer_store_short v{O}, v{OA}, s[44:47], s66 offen {o['outsc']}")
    a("L_giveup2:")
    a("s_cmp_eq_u32 s88, 0")
    a("s_cbranch_scc0 L_fin")
    a("L_giveup:")
    a("s_barrier")
    a("L_fin:")
    if o["stamp"]:
        st(a, o, 7)
        dump_stamps(a, o, 8, WAVE, nwaves=NW)
    if o["amp"]:
        st(a, o, 7)
        a("s_waitcnt lgkmcnt(0)")
        j = o["amp"]
        a(f"s_sub_u32 s60, s{70+2*j}, s70")
        a(f"s_mul_i32 s60, s60, {o['mult']}")
        a(f"s_add_u32 s60, s60, {o['base']}")
        if not o["amph"]:
            a("s_cmp_ge_u32 s69, 256")
            a("s_cbranch_scc1 L_end")
        a("L_spin:")
        a("s_sleep 2")
        a("s_memrealtime s[86:87]")
        a("s_waitcnt lgkmcnt(0)")
        a("s_sub_u32 s86, s86, s70")
        a("s_cmp_lt_u32 s86, s60")
        a("s_cbranch_scc1 L_spin")
    a("L_end:")
    a("s_endpgm")


def gen9(o):
    a = Asm()
    main = NAME + "_kernel"
    a.lines.append((HEADER + f"; @launch grid=(256,1,1) block=(320,1,1) lds=17408\n").rstrip())
    a('.amdgcn_target "amdgcn-amd-amdhsa--gfx950"')
    a(".text")
    a(f".globl {main}")
    kernel(a, o, main)
    a('.section .rodata,"a"')
    a(".p2align 6")
    kd(a, main, 256)
    return a.text()


DEF = dict(nt="nt", map=1, stamp=0, amp=0, amph=0, mult=0, base=6000, maxspin=200000, mlsleep=16, ldssleep=4,
           pollat=3, fakexcc=0, w=10, budget=160, outsc="", we=0, wfrac=0, sprint=28, fastmask=0xaa, leadsleep=100, wpat='5', x=0, incr=1)
if __name__ == "__main__":
    o = dict(DEF)
    for kv in sys.argv[2:]:
        k, v = kv.split("=")
        assert k in o, k
        o[k] = int(v, 0) if v.lstrip("-").replace("0x", "").isalnum() and v.lstrip("-")[0].isdigit() else v.replace("+", " ")
    open(sys.argv[1], "w").write(gen9(o))
```

```python
import sys
from gen import Asm, vr, srd, HEADER, NAME, C_SC, C_MASK, xlane_sum_all, dump_stamps, kd, ids
from gen4 import sent_check
import hz

NW = 5
PO_BYTES = 8 * 131072
PB_OFF = PO_BYTES
ML_OFF = 2 * PO_BYTES
WS_BYTES = ML_OFF + 8 * 4096
LM, LL, LF, LT, LFLAG = 0x4000, 0x4100, 0x4200, 0x4300, 0x4380
F_ML, F_PROG, F_MODE, F_PB = 0, 4, 8, 12


def st(a, o, idx):
    if o["stamp"] or o["amp"]:
        a(f"s_memrealtime s[{70+2*idx}:{71+2*idx}]")


def kernel(a, o, label):
    nt = o["nt"]
    W = o["w"]
    RN = 32
    VK, VV, OADR, M, X0, X1, FROW, MWR, STA, WAVE, LANE, FLG, C1 = range(1, 14)
    Q0 = 16
    ONE = 16
    RING = 24
    S0 = 152
    W0 = S0 + 32
    T0 = 216
    O0, L0 = 216, 248
    KT = 252

    a(".p2align 8")
    a(f".type {label},@function")
    a(f"{label}:")
    a("s_load_dwordx16 s[4:19], s[0:1], 0")
    a("s_load_dwordx2 s[20:21], s[0:1], 64")
    a("s_cmp_ge_u32 s2, 256")
    a("s_cbranch_scc1 L_end")
    a("v_readfirstlane_b32 s69, v0")
    a(f"v_mov_b32 v{FLG}, {LFLAG:#x}")
    a("v_mov_b32 v24, 0")
    a("v_mov_b32 v25, 0")
    a("s_cmp_ge_u32 s69, 256")
    a("s_cbranch_scc0 L_worker")
    a(f"ds_write_b64 v{FLG}, v[24:25]")
    a(f"ds_write_b64 v{FLG}, v[24:25] offset:8")
    a("s_waitcnt lgkmcnt(0)")
    a("s_barrier")
    a("s_branch L_helper")
    a("L_worker:")
    st(a, o, 0)
    ids(a, o)
    a(f"v_lshrrev_b32 v{WAVE}, 6, v0")
    a(f"v_and_b32 v{LANE}, 63, v0")
    if o["alt"] == 2:
        a(f"v_lshrrev_b32 v{X0}, 7, v0")
        a(f"v_bfe_u32 v{X1}, v0, 6, 1")
        a(f"v_lshlrev_b32 v{X1}, 12, v{X1}")
        a(f"v_lshl_add_u32 v14, v{X0}, 14, v{X1}")
    else:
        a(f"v_lshlrev_b32 v14, 13, v{WAVE}")
    a(f"v_lshl_add_u32 v{VV}, v{LANE}, 4, v14")
    a(f"v_bfe_u32 v{X0}, v0, 4, 2")
    a(f"v_and_b32 v{X1}, 3, v0")
    a(f"v_lshlrev_b32 v{M}, 4, v{X1}")
    a(f"v_lshl_add_u32 v{M}, v{X0}, 6, v{M}")
    a(f"v_bfe_u32 v{X1}, v0, 2, 2")
    a(f"v_lshl_add_u32 v{VK}, v{X1}, 8, v{M}")
    a(f"v_add_u32 v{VK}, v14, v{VK}")
    a(f"v_and_b32 v{X1}, 7, v0")
    a(f"v_lshlrev_b32 v{STA}, 4, v{X1}")
    a(f"v_lshlrev_b32 v{X1}, 8, v{X1}")
    a(f"v_lshl_add_u32 v{X1}, v{X0}, 6, v{X1}")
    a(f"v_bfe_u32 v{X0}, v0, 3, 1")
    a(f"v_lshl_add_u32 v{X1}, v{X0}, 4, v{X1}")
    a(f"v_lshrrev_b32 v{X0}, 3, v0")
    a(f"v_lshl_add_u32 v{STA}, v{X0}, 12, v{STA}")
    if o["alt"] == 1:
        a(f"v_xor_b32 v14, 0x2000, v{VK}")
        a(f"v_xor_b32 v15, 0x2000, v{VV}")
    a("s_lshl_b32 s3, s22, 23")
    a("s_lshl_b32 s40, s23, 18")
    a("s_add_u32 s3, s3, s40")
    a("s_lshl_b32 s41, s22, 11")
    a("s_mov_b32 s26, 0x40000")
    a("s_mov_b32 s27, 0x20000")
    a("s_mov_b32 s34, 0x4000")
    a("s_mov_b32 s35, 0x20000")
    a(f"s_movk_i32 s91, {0x2000 if o['alt'] == 2 else 0x1000:#x}")
    a("s_waitcnt lgkmcnt(0)")
    st(a, o, 1)
    a("s_add_u32 s24, s6, s3")
    a("s_addc_u32 s25, s7, 0")

    def load(n):
        strm, t, i = n >> 6, (n >> 3) & 7, n & 7
        buf = RING + 4 * (n % RN)
        voff, sb = (VK, 24) if strm == 0 else (VV, 28)
        hi = 8192 if o["alt"] == 2 else 4096
        if o["alt"] == 1 and (t & 1):
            voff = 14 + strm
        if t == 0:
            so = "0" if i < 4 else "s91"
        else:
            if i % 4 == 0:
                a(f"s_mov_b32 s90, {t*32768 + (i>>2)*hi:#x}")
            so = "s90"
        a(f"buffer_load_dwordx4 {vr(buf,4)}, v{voff}, s[{sb}:{sb+3}], {so} offen offset:{(i&3)*1024} {nt}")

    load(0)
    a("s_mov_b32 s32, s4")
    a("s_mov_b32 s33, s5")
    a(f"buffer_load_dwordx4 {vr(Q0,4)}, v{X1}, s[32:35], s41 offen")
    a(f"buffer_load_dwordx4 {vr(Q0+4,4)}, v{X1}, s[32:35], s41 offen offset:32")
    for n in range(1, W):
        load(n)
    if not o["probe"]:
        st(a, o, 2)
    a("s_mov_b32 s36, s20")
    a("s_mov_b32 s37, s21")
    a(f"s_mov_b32 s38, {WS_BYTES:#x}")
    a("s_mov_b32 s39, 0x20000")
    a("s_lshl_b32 s92, s22, 17")
    a("s_lshl_b32 s95, s23, 7")
    a("s_add_u32 s92, s92, s95")
    for r in range(4):
        a(f"v_mov_b32 v{L0+r}, -1")
    a(f"buffer_store_dwordx4 {vr(L0,4)}, v{STA}, s[36:39], s92 offen")
    a("s_cmp_eq_u32 s69, 64")
    a("s_cbranch_scc0 L_side_done")
    srd(a, 48, 10, 2048)
    a("s_lshl_b32 s61, s22, 8")
    a(f"buffer_load_dwordx4 {vr(KT,4)}, v{M}, s[48:51], s61 offen")
    a("L_side_done:")
    a("s_add_u32 s28, s8, s3")
    a("s_addc_u32 s29, s9, 0")
    a("s_mov_b32 s30, 0x40000")
    a("s_mov_b32 s31, 0x20000")
    a("s_mov_b32 s101, 0xfffffffe")
    a(f"s_mov_b32 s68, {C_SC:#x}")
    a("s_mov_b32 s42, 0x05040100")
    a("s_mov_b32 s43, 0x07060302")
    if o["we"]:
        a("s_getreg_b32 s57, hwreg(HW_REG_XCC_ID, 0, 3)")
        a(f"s_lshr_b32 s57, {o['fastmask']:#x}, s57")
        a("s_and_b32 vcc_lo, s57, 1")
        a("s_mov_b32 vcc_hi, 0")
    a(f"v_mov_b32 v{C1}, 1")
    a(f"v_and_b32 v{MWR}, 15, v0")
    a(f"v_lshlrev_b32 v{MWR}, 4, v{MWR}")
    a(f"v_lshl_add_u32 v{MWR}, v{WAVE}, 2, v{MWR}")
    a(f"v_lshrrev_b32 v{FROW}, 5, v0")
    a(f"v_lshlrev_b32 v{FROW}, 4, v{FROW}")
    a(f"v_and_b32 v{OADR}, 7, v0")
    a(f"v_mul_u32_u24 v{OADR}, 528, v{OADR}")
    a(f"v_lshl_add_u32 v{OADR}, v{WAVE}, 12, v{OADR}")
    a(f"v_bfe_u32 v{X0}, v0, 4, 2")
    a(f"v_lshl_add_u32 v{OADR}, v{X0}, 7, v{OADR}")
    a(f"v_and_b32 v{X0}, 8, v0")
    a(f"v_lshlrev_b32 v{X0}, 3, v{X0}")
    a(f"v_xor_b32 v{OADR}, v{X0}, v{OADR}")

    a("s_barrier")
    items = []
    def item(lines, need=-1, cost=None, frees=None):
        if isinstance(lines, str):
            lines = [lines]
        if cost is None:
            cost = sum(10 if l.startswith("v_mfma") else 8 if l.startswith("v_exp") else 4 for l in lines)
        items.append((lines, cost, need, frees))
    def sub(fn, *args, **kw):
        b = Asm()
        fn(b, *args, **kw)
        return [l.strip() for l in b.lines]
    def flagl(off):
        return ["s_mov_b64 exec, 1", f"ds_add_u32 v{FLG}, v{C1} offset:{off}", "s_mov_b64 exec, -1"]
    def KB(j):
        return RING + 4 * (j % RN)
    for j in range(64 + 5):
        need = max(min(j, 63), 1)
        if j < 64:
            i = j % 8
            item(f"v_mfma_f32_16x16x32_bf16 {vr(T0+4*i+2,4)}, {vr(KB(j),4)}, {vr(Q0,4)}, 0", need)
        if 0 <= j - 2 < 64:
            i = (j - 2) % 8
            item(f"v_mfma_f32_16x16x32_bf16 {vr(T0+4*i,4)}, {vr(KB(j-2),4)}, {vr(Q0+4,4)}, {vr(T0+4*i,4)}", need, frees=j - 2)
        jj = j - 5
        if 0 <= jj < 64:
            i = jj % 8
            item(f"v_add_f32_dpp v{S0+jj}, v{T0+4*i+3}, v{T0+4*i+2} row_ror:8 row_mask:0xf bank_mask:0xf", need)
            if jj == 1:
                item(f"v_max_f32 v{M}, v{S0}, v{S0+1}", need)
            elif jj % 2 == 1:
                item(f"v_max3_f32 v{M}, v{S0+jj-1}, v{S0+jj}, v{M}", need)
        if j == W + 2:
            item(["s_cmp_eq_u32 s69, 64", "s_cbranch_scc0 L_notree", ";SKIP_BEGIN",
                  f"v_mfma_f32_16x16x32_bf16 {vr(W0+2,4)}, {vr(KT,4)}, {vr(Q0,4)}, 0",
                  f"v_mfma_f32_16x16x32_bf16 {vr(W0,4)}, {vr(KT,4)}, {vr(Q0+4,4)}, {vr(W0,4)}",
                  f"v_and_b32 v{X0}, 15, v0", f"v_lshlrev_b32 v{X0}, 2, v{X0}",
                  f"v_add_f32_dpp v{X1}, v{W0+3}, v{W0+2} row_ror:8 row_mask:0xf bank_mask:0xf",
                  f"ds_write_b32 v{X0}, v{X1} offset:{LT}", ";SKIP_END", "L_notree:"], need, cost=10)
    if o["stamp"] or o["amp"]:
        item(sub(st, o, 3), 63)
    xl = [l for l in sub(xlane_sum_all, [M], X0, [16, 32], op="v_max_f32") if not l.startswith("s_nop")]
    item(xl, 63)
    item([f"v_mov_b32 v{ONE+r}, 0x3f803f80" for r in range(4)] + [f"v_mul_f32 v{M}, s68, v{M}",
          f"ds_write_b32 v{MWR}, v{M} offset:{LM}"], 63)
    for t in range(8):
        for i in range(8):
            item(f"v_fma_f32 v{S0+8*t+i}, v{S0+8*t+i}, s68, -v{M}", 63)
        for i in range(8):
            item(f"v_exp_f32 v{S0+8*t+i}, v{S0+8*t+i}", 63)
        if t > 0:
            for k in range(4 * t - 4, 4 * t):
                item(f"v_cvt_pk_bf16_f32 v{S0+k}, v{S0+2*k}, v{S0+2*k+1}", 63)
        if t > 1:
            c = "0" if t == 2 else vr(L0, 4)
            item(f"v_mfma_f32_16x16x32_bf16 {vr(L0,4)}, {vr(ONE,4)}, {vr(S0+4*(t-2),4)}, {c}", 63)
    for k in range(28, 32):
        item(f"v_cvt_pk_bf16_f32 v{S0+k}, v{S0+2*k}, v{S0+2*k+1}", 63)
    item(f"v_mfma_f32_16x16x32_bf16 {vr(L0,4)}, {vr(ONE,4)}, {vr(S0+24,4)}, {vr(L0,4)}", 63)
    item(f"v_mfma_f32_16x16x32_bf16 {vr(L0,4)}, {vr(ONE,4)}, {vr(S0+28,4)}, {vr(L0,4)}", 63)
    item([f"v_lshlrev_b32 v{X1}, 4, v0", f"ds_write_b32 v{MWR}, v{L0} offset:{LL}"] + flagl(F_ML), 63, cost=60)
    if o["stamp"] or o["amp"]:
        item(sub(st, o, 4), 63)
    for t in range(8):
        if t == o["pollat"] or t == 7:
            item(flagl(F_PROG), 63 + 8 * t)
        def mf(j):
            c = "0" if t == 0 else vr(O0 + 4 * j, 4)
            return f"v_mfma_f32_16x16x32_bf16 {vr(O0+4*j,4)}, {vr(W0+4*j,4)}, {vr(S0+4*t,4)}, {c}"
        for m in range(4):
            n0 = 64 + 8 * t + 2 * m
            pm = {}
            for u in range(4):
                for half in range(2):
                    j = 2 * u + half
                    pm[j] = f"v_perm_b32 v{W0+4*j+m}, v{KB(n0+1)+u}, v{KB(n0)+u}, s{42+half}"
            if t == 7 and m == 3:
                order = [0, 4, 1, 5, 2, 6, 3, 7]
                ls = [pm[order[0]], pm[order[1]], pm[order[2]]]
                for x in range(8):
                    ls.append(mf(order[x]))
                    if x + 3 < 8:
                        ls.append(pm[order[x + 3]])
                item(ls, n0 + 1, frees=n0 + 1)
            else:
                item([pm[j] for j in range(8)], n0 + 1, frees=n0 + 1)
        if t < 7:
            for j in range(8):
                item(mf(j), 64 + 8 * t + 7, cost=16)
        if t == 5:
            item([f"v_xor_b32 v{S0+j}, {j<<4}, v{OADR}" for j in range(1, 4)], 64 + 8 * t + 7)
    start = len(a.lines)
    q = 0
    freed = -1
    avail = -1
    for n in range(W, 128):
        assert n - RN <= freed, (n, freed)
        we = o["we"]
        if we and n < 128 - o["sprint"] and (o["wfrac"] == 0 or n % o["wfrac"] != 0):
            a(f"s_cbranch_vccnz L_th{n}")
            a(f"s_waitcnt vmcnt({we-1})")
            a(f"L_th{n}:")
        wn = W
        if o["wpat"] != "" and n < 128 - o["sprint"]:
            pat = str(o["wpat"])
            wn = int(pat[n % len(pat)])
        a(f"s_waitcnt vmcnt({wn-1})")
        if n == o["probe"]:
            st(a, o, 2)
        load(n)
        avail = max(avail, n - wn)
        budget = o["budget"]
        while q < len(items) and items[q][2] <= avail and budget > 0:
            for l in items[q][0]:
                a(l)
            budget -= items[q][1]
            if items[q][3] is not None:
                freed = items[q][3]
            q += 1
    while q < len(items):
        if items[q][2] > avail:
            avail = items[q][2]
            a(f"s_waitcnt vmcnt({127-avail})")
        for l in items[q][0]:
            a(l)
        q += 1
    st(a, o, 5)
    for j in range(4):
        for r in range(4):
            a(f"v_mov_b32_dpp v{O0+4*j+r}, v{O0+4*(j+4)+r} row_shr:8 row_mask:0xf bank_mask:0xc")
        a(f"ds_write_b128 v{OADR if j == 0 else S0+j}, {vr(O0+4*j,4)}")
    a.lines[start:] = hz.fix(a.lines[start:])
    a("s_waitcnt lgkmcnt(0)")
    a("s_barrier")
    OR, FR = RING, RING + 16
    a(f"ds_read_b128 {vr(FR,4)}, v{FROW} offset:{LF}")
    for w in range(4):
        a(f"ds_read_b128 {vr(OR+4*w,4)}, v{X1} offset:{4096*w}")
    a(f"ds_read_b32 v{X0}, v{FLG} offset:{F_MODE}")
    fine = not (o["stamp"] or o["amp"])
    for w in range(4):
        a(f"s_waitcnt lgkmcnt({4-w})" if fine else "s_waitcnt lgkmcnt(0)")
        for r in range(4):
            if w == 0:
                a(f"v_mul_f32 v{OR+r}, v{FR}, v{OR+r}")
            else:
                a(f"v_fmac_f32 v{OR+r}, v{FR+w}, v{OR+4*w+r}")
    for r in range(4):
        a(f"v_min_u32 v{OR+r}, s101, v{OR+r}")
    a(f"buffer_store_dwordx4 {vr(OR,4)}, v{STA}, s[36:39], s92 offen")
    st(a, o, 6)
    a("s_waitcnt lgkmcnt(0)")
    a(f"v_readfirstlane_b32 s94, v{X0}")
    a(f"s_add_u32 s92, s92, {PB_OFF:#x}")
    a("s_nop 1")
    a("s_cmp_eq_u32 s94, 1")
    a("s_cbranch_scc1 L_fin")
    a(f"buffer_store_dwordx4 {vr(OR,4)}, v{STA}, s[36:39], s92 offen sc1")
    a("s_waitcnt vmcnt(0)")
    for l in flagl(F_PB):
        a(l)
    a("s_branch L_fin")

    a("L_helper:")
    if o["x"] == 1:
        a("v_mov_b32 v24, 1")
        a(f"ds_write_b32 v{FLG}, v24 offset:{F_MODE}")
        a("s_waitcnt lgkmcnt(0)")
        a("s_endpgm")
    B = RING
    mk, stv, vt, om, Z0, OA, ox, Mx, L, FV, ROW, FA = (B + i for i in range(2, 14))
    X, ML, F, O, T, Z, OB, MLA, VTA, BP, X2 = B + 16, B + 32, B + 36, B + 44, B + 48, B + 56, B + 60, B + 64, B + 65, B + 66, B + 72
    st(a, o, 0)
    ids(a, o)
    a(f"v_lshrrev_b32 v{WAVE}, 6, v0")
    a(f"v_and_b32 v{LANE}, 63, v0")
    a("s_lshr_b32 s40, s23, 2")
    a("s_and_b32 s41, s23, 3")
    a("s_lshl_b32 s100, s22, 5")
    a("s_lshl_b32 s65, s22, 12")
    a(f"s_add_u32 s65, s65, {ML_OFF:#x}")
    a("s_lshl_b32 s95, s23, 7")
    a("s_add_u32 s93, s65, s95")
    a("s_lshl_b32 s95, s40, 4")
    a("s_add_u32 s65, s65, s95")
    a("s_lshl_b32 s60, s22, 3")
    a("s_add_u32 s60, s60, s40")
    a("s_lshl_b32 s60, s60, 8")
    a("s_lshl_b32 s61, s22, 8")
    a("s_lshl_b32 s67, s41, 6")
    a("s_add_u32 s63, s61, s67")
    a("s_add_u32 s66, s60, s67")
    a("s_lshl_b32 s64, s22, 17")
    a("s_lshl_b32 s67, s23, 12")
    a("s_add_u32 s64, s64, s67")
    a("s_lshr_b32 s62, s22, 2")
    a("s_lshl_b32 s62, s62, 4")
    for d, n in ((36, WS_BYTES), (44, 0x4000), (96, 256)):
        a(f"s_mov_b32 s{d+2}, {n:#x}")
        a(f"s_mov_b32 s{d+3}, 0x20000")
    a(f"v_mov_b32 v{Z0}, 0")
    a(f"v_and_b32 v{X0}, 7, v{LANE}")
    a(f"v_lshlrev_b32 v{MLA}, 4, v{X0}")
    a(f"v_xor_b32 v{OA}, s40, v{X0}")
    a(f"v_lshlrev_b32 v{OA}, 1, v{OA}")
    a(f"v_bfe_u32 v{X1}, v{LANE}, 3, 2")
    a(f"v_lshl_add_u32 v{VTA}, v{X1}, 4, v{OA}")
    a(f"v_bfe_u32 v{X1}, v{LANE}, 4, 1")
    a(f"v_lshl_add_u32 v{OA}, v{X1}, 5, v{OA}")
    a(f"v_bfe_u32 v{X1}, v{LANE}, 5, 1")
    a(f"v_lshl_add_u32 v{OA}, v{X1}, 4, v{OA}")
    a(f"v_lshrrev_b32 v{X1}, 3, v{LANE}")
    a(f"v_lshlrev_b32 v{ox}, 9, v{X1}")
    a(f"v_lshl_add_u32 v{ox}, v{X0}, 4, v{ox}")
    a(f"v_lshlrev_b32 v{BP}, 4, v{X1}")
    a(f"v_and_b32 v{om}, 31, v{LANE}")
    a(f"v_lshlrev_b32 v{om}, 7, v{om}")
    a(f"v_and_b32 v{ROW}, 15, v{LANE}")
    a(f"v_lshlrev_b32 v{ROW}, 4, v{ROW}")
    a(f"s_mov_b32 s58, {o['maxspin']}")
    a("s_getreg_b32 s57, hwreg(HW_REG_XCC_ID, 0, 4)")
    if o["fakexcc"]:
        a("s_lshr_b32 s57, s2, 3")
        a("s_and_b32 s57, s57, 1")
    a("s_waitcnt lgkmcnt(0)")
    st(a, o, 1)
    a("s_load_dword s56, s[14:15], 0")
    a("s_add_u32 s12, s12, s63")
    a("s_addc_u32 s13, s13, 0")
    a("s_load_dwordx8 s[24:31], s[12:13], 0")
    a("s_load_dwordx8 s[48:55], s[12:13], 32")
    a("s_mov_b32 s36, s20")
    a("s_mov_b32 s37, s21")
    a("s_mov_b32 s44, s16")
    a("s_mov_b32 s45, s17")
    a("s_mov_b32 s96, s18")
    a("s_mov_b32 s97, s19")
    a("s_cmp_eq_u32 s23, 0")
    a("s_cbranch_scc0 L_nolead")
    for r in range(4):
        a(f"v_mov_b32 v{Z+r}, -1")
    a(f"v_lshlrev_b32 v{FA}, 4, v{LANE}")
    a(f"v_mov_b32 v{FV}, 1")
    a("s_setprio 3")
    for k in range(4):
        a(f"buffer_store_dwordx4 {vr(Z,4)}, v{FA}, s[36:39], s93 offen offset:{1024*k} sc1")
    a("s_waitcnt vmcnt(0)")
    a("s_mov_b64 exec, 1")
    a(f"buffer_store_dword v{FV}, v{Z0}, s[96:99], s100 offen sc1")
    a("s_mov_b64 exec, -1")
    a("s_setprio 0")
    a("L_nolead:")
    a("s_waitcnt lgkmcnt(0)")
    for i in range(16):
        a(f"v_writelane_b32 v{X0}, s{24+i if i < 8 else 40+i}, {i}")
    a(f"v_and_b32 v{X1}, 0x3c, v{VTA}")
    a(f"ds_bpermute_b32 v{vt}, v{X1}, v{X0}")
    a(f"v_and_b32 v{X1}, 2, v{VTA}")
    a(f"v_lshlrev_b32 v{X1}, 3, v{X1}")
    a("s_lshr_b32 s56, s56, s62")
    a("s_lshl_b32 s56, s56, 16")
    a(f"v_sub_f32 v{mk}, 1.0, s56")
    a(f"v_mul_f32 v{mk}, {C_MASK:#x}, v{mk}")
    a("s_lshl_b32 s94, s40, 2")
    a("s_waitcnt lgkmcnt(0)")
    a(f"v_lshrrev_b32 v{vt}, v{X1}, v{vt}")
    a(f"v_lshlrev_b32 v{vt}, 16, v{vt}")
    a(f"v_mov_b32 v{VTA}, s94")
    a("s_mov_b32 s101, 0xfffffffe")

    def ldsspin(off, val, lab, out):
        a(f"{lab}:")
        a("s_sub_u32 s58, s58, 1")
        a(f"s_cbranch_scc1 {out}")
        a(f"s_sleep {o['ldssleep']}")
        a(f"ds_read_b32 v{X0}, v{FLG} offset:{off}")
        a("s_waitcnt lgkmcnt(0)")
        a(f"v_readfirstlane_b32 s94, v{X0}")
        a("s_nop 2")
        a(f"s_cmp_ge_u32 s94, {val}")
        a(f"s_cbranch_scc0 {lab}")

    def dbgword(off):
        a(f"buffer_load_dword v{FV}, v{Z0}, s[96:99], s100 offen offset:{off} sc1")
        a("s_waitcnt vmcnt(0)")
        a(f"v_readfirstlane_b32 s94, v{FV}")
        a("s_nop 2")

    if o["x"] == 4:
        ldsspin(F_PROG, 8, "L_spx", "L_giveup")
        a("v_mov_b32 v24, 1")
        a(f"ds_write_b32 v{FLG}, v24 offset:{F_MODE}")
        a("s_waitcnt lgkmcnt(0)")
        a("s_endpgm")
    a("L_lead:")
    a("s_sub_u32 s58, s58, 1")
    a("s_cbranch_scc1 L_giveup")
    a(f"s_sleep {o['leadsleep']}")
    a("s_setprio 3")
    dbgword(0)
    a("s_setprio 0")
    a("s_cmp_eq_u32 s94, 0")
    a("s_cbranch_scc1 L_lead")
    st(a, o, 2)
    ldsspin(F_ML, 4, "L_sp1", "L_giveup")
    a(f"ds_read_b128 {vr(T,4)}, v{ROW} offset:{LM}")
    a(f"ds_read_b128 {vr(T+4,4)}, v{ROW} offset:{LL}")
    a(f"ds_read_b32 v{stv}, v{VTA} offset:{LT}")
    a("s_waitcnt lgkmcnt(0)")
    a(f"v_max3_f32 v{Z}, v{T}, v{T+1}, v{T+2}")
    a(f"v_max_f32 v{Z}, v{T+3}, v{Z}")
    for w in range(4):
        a(f"v_sub_f32 v{T+w}, v{T+w}, v{Z}")
    for w in range(4):
        a(f"v_exp_f32 v{T+w}, v{T+w}")
    a(f"v_mov_b32 v{Z+2}, s57")
    a(f"v_mov_b32 v{Z+3}, 0")
    a(f"ds_write_b128 v{ROW}, {vr(T,4)} offset:{LF}")
    a(f"v_mul_f32 v{Z+1}, v{T}, v{T+4}")
    for w in range(1, 4):
        a(f"v_fmac_f32 v{Z+1}, v{T+w}, v{T+4+w}")
    a(f"v_min_u32 v{Z}, s101, v{Z}")
    a(f"v_min_u32 v{Z+1}, s101, v{Z+1}")
    a("s_setprio 3")
    a("s_mov_b64 exec, 0xff")
    a(f"buffer_store_dwordx4 {vr(Z,4)}, v{MLA}, s[36:39], s93 offen sc1")
    a("s_mov_b64 exec, -1")
    a("s_setprio 0")
    a(f"v_mul_f32 v{stv}, {C_SC:#x}, v{stv}")
    a(f"v_add_f32 v{stv}, v{stv}, v{mk}")
    if o["x"] == 2:
        a("v_mov_b32 v24, 1")
        a(f"ds_write_b32 v{FLG}, v24 offset:{F_MODE}")
        a("s_waitcnt lgkmcnt(0)")
        a("s_endpgm")
    st(a, o, 3)
    ldsspin(F_PROG, 1, "L_sp2", "L_giveup")
    st(a, o, 4)
    a("s_setprio 3")
    a("s_mov_b32 s88, 0")
    a("L_mlpoll:")
    a("s_sub_u32 s58, s58, 1")
    a("s_cbranch_scc1 L_giveup2")
    a(f"buffer_load_dwordx4 {vr(ML,4)}, v{om}, s[36:39], s65 offen sc1")
    a("s_waitcnt vmcnt(0)")
    a(f"v_max3_u32 v{X0}, v{ML}, v{ML+1}, v{ML+2}")
    a(f"v_cmp_eq_u32 vcc, -1, v{X0}")
    a("s_cbranch_vccz L_mlgot")
    a("s_cmp_eq_u32 s88, 0")
    a("s_cbranch_scc0 L_mlpoll")
    a(f"s_sleep {o['mlsleep']}")
    a(f"ds_read_b32 v{X0}, v{FLG} offset:{F_PROG}")
    a("s_waitcnt lgkmcnt(0)")
    a(f"v_readfirstlane_b32 s95, v{X0}")
    a("s_nop 2")
    a("s_cmp_le_u32 s95, 4")
    a("s_cbranch_scc1 L_mlpoll")
    a("s_barrier")
    a("s_mov_b32 s88, 1")
    a("s_branch L_mlpoll")
    a("L_mlgot:")
    a(f"v_cmp_ne_u32 vcc, s57, v{ML+2}")
    a(f"v_max_f32 v{Mx}, v{ML}, v{stv}")
    a("s_nop 0")
    a("s_cmp_eq_u64 vcc, 0")
    a("s_cselect_b32 s56, 1, 0")
    a(f"v_mov_b32 v{X1}, s56")
    a(f"ds_write_b32 v{FLG}, v{X1} offset:{F_MODE}")
    xlane_sum_all(a, [Mx], T, [1, 2, 4, 8, 16], op="v_max_f32")
    a(f"v_sub_f32 v{F+5}, v{ML}, v{Mx}")
    a(f"v_sub_f32 v{F+4}, v{stv}, v{Mx}")
    a(f"v_exp_f32 v{F+5}, v{F+5}")
    a(f"v_exp_f32 v{F+4}, v{F+4}")
    a("s_nop 0")
    a(f"v_mul_f32 v{L}, v{F+5}, v{ML+1}")
    a("s_nop 1")
    xlane_sum_all(a, [L], T, [1, 2, 4, 8, 16])
    a(f"v_add_f32 v{L}, v{L}, v{F+4}")
    a(f"v_rcp_f32 v{L}, v{L}")
    a("s_nop 0")
    a(f"v_mul_f32 v{F+5}, v{F+5}, v{L}")
    a(f"v_mul_f32 v{F+4}, v{F+4}, v{L}")
    for k in range(4):
        a(f"ds_bpermute_b32 v{F+k}, v{BP}, v{F+5} offset:{4*k}")
    a(f"v_mul_f32 v{X0}, v{F+4}, v{vt}")
    for r in range(4):
        a(f"v_mov_b32 v{OB+r}, 0")
    for r in range(4):
        a(f"s_mov_b64 exec, {0xff << (8*r):#x}") if r < 3 else a("s_mov_b32 exec_lo, 0xff000000")
        a(f"v_mov_b32 v{OB+r}, v{X0}")
    a("s_mov_b64 exec, -1")
    a("s_waitcnt lgkmcnt(0)")
    if o["x"] == 3:
        a("s_endpgm")
    st(a, o, 5)
    a("s_cmp_eq_u32 s56, 1")
    a("s_cbranch_scc1 L_poll")
    a("s_cmp_eq_u32 s88, 0")
    a("s_cbranch_scc0 L_postbar")
    a("s_barrier")
    a("s_mov_b32 s88, 1")
    a("L_postbar:")
    ldsspin(F_PB, 4, "L_sp4", "L_fin")
    a(f"v_mov_b32 v{X0}, 1")
    a("s_mov_b64 exec, 1")
    a(f"buffer_atomic_add v{X0}, v{Z0}, s[96:99], s100 offen offset:4 sc1")
    a("s_mov_b64 exec, -1")
    a("L_c2:")
    a("s_sub_u32 s58, s58, 1")
    a("s_cbranch_scc1 L_fin")
    dbgword(4)
    a("s_cmp_ge_u32 s94, 32")
    a("s_cbranch_scc0 L_c2")
    a(f"s_add_u32 s64, s64, {PB_OFF:#x}")

    def finalmath(b, Xb):
        for r in range(4):
            b(f"v_fma_f32 v{O+r}, v{F}, v{Xb+r}, v{OB+r}")
        for k in range(1, 4):
            for r in range(4):
                b(f"v_fmac_f32 v{O+r}, v{F+k}, v{Xb+4*k+r}")
        b(f"v_permlane32_swap_b32 v{O}, v{O+1}")
        b(f"v_permlane32_swap_b32 v{O+2}, v{O+3}")
        b(f"v_add_f32 v{O}, v{O}, v{O+1}")
        b(f"v_add_f32 v{O+2}, v{O+2}, v{O+3}")
        b(f"v_permlane16_swap_b32 v{O}, v{O+2}")
        b(f"v_add_f32 v{O}, v{O}, v{O+2}")
        b(f"v_add_f32_dpp v{O}, v{O}, v{O} row_ror:8 row_mask:0xf bank_mask:0xf")
        b(f"v_cvt_pk_bf16_f32 v{O}, v{O}, v{O}")
    if o["incr"]:
        a("L_poll:")
        for k in range(4):
            a(f"s_mov_b64 s[{24+2*k}:{25+2*k}], -1")
        a("L_poll2:")
        a("s_sub_u32 s58, s58, 1")
        a("s_cbranch_scc1 L_giveup2")
        for k in range(4):
            a(f"s_mov_b64 exec, s[{24+2*k}:{25+2*k}]")
            a(f"s_cbranch_execz L_pk{k}")
            a(f"buffer_load_dwordx4 {vr(X+4*k,4)}, v{ox}, s[36:39], s64 offen offset:{128*k} sc1")
            a(f"L_pk{k}:")
        a("s_mov_b64 exec, -1")
        a("s_waitcnt vmcnt(0)")
        b = Asm()
        for k in range(4):
            b(f"v_max3_u32 v{T+k}, v{X+4*k}, v{X+4*k+1}, v{X+4*k+2}")
        for k in range(4):
            b(f"v_max_u32 v{T+k}, v{T+k}, v{X+4*k+3}")
        for k in range(4):
            b(f"v_cmp_eq_u32 s[{24+2*k}:{25+2*k}], -1, v{T+k}")
        for r in range(4):
            b(f"v_fma_f32 v{O+r}, v{F}, v{X+r}, v{OB+r}")
        b("s_or_b64 s[32:33], s[24:25], s[26:27]")
        b("s_or_b64 s[34:35], s[28:29], s[30:31]")
        b("s_or_b64 s[32:33], s[32:33], s[34:35]")
        b("s_cselect_b32 s94, s88, 0")
        b("s_cmp_eq_u32 s94, 1")
        b("s_cbranch_scc1 L_poll3" if o["boff"] else "s_cbranch_scc1 L_poll2")
        c = Asm()
        finalmath(c, X)
        b.lines += c.lines[4:]
        a.lines += hz.fix(b.lines)
        a("s_cmp_eq_u64 s[32:33], 0")
        a("s_cbranch_scc1 L_done")
        a("s_barrier")
        a("s_mov_b32 s88, 1")
        st(a, o, 6)
        a("s_branch L_poll2")
        if o["boff"]:
            a("L_poll3:")
            a("s_bcnt1_i32_b64 s94, s[32:33]")
            a(f"s_cmp_le_u32 s94, {o['boffn']}")
            a("s_cbranch_scc1 L_poll2")
            a(f"s_sleep {o['boff']}")
            a("s_branch L_poll2")
    else:
        def pollld(Xb):
            for k in range(4):
                a(f"buffer_load_dwordx4 {vr(Xb+4*k,4)}, v{ox}, s[36:39], s64 offen offset:{128*k} sc1")
        def pollmath(Xb):
            b = Asm()
            sent_check(b, Xb, 16, X0, X1)
            finalmath(b, Xb)
            a.lines += hz.fix(b.lines)
        a("L_poll:")
        pollld(X)
        a("L_poll2:")
        a("s_sub_u32 s58, s58, 1")
        a("s_cbranch_scc1 L_giveup2")
        pollld(X2)
        a("s_waitcnt vmcnt(4)")
        pollmath(X)
        a("s_cbranch_vccz L_done")
        pollld(X)
        a("s_waitcnt vmcnt(4)")
        pollmath(X2)
        a("s_cbranch_vccz L_done")
        a("s_cmp_eq_u32 s88, 0")
        a("s_cbranch_scc0 L_poll2")
        a("s_waitcnt vmcnt(0)")
        a("s_barrier")
        a("s_mov_b32 s88, 1")
        st(a, o, 6)
        a("s_branch L_poll")
    a("L_done:")
    a(f"buffer_store_short v{O}, v{OA}, s[44:47], s66 offen {o['outsc']}")
    a("L_giveup2:")
    a("s_cmp_eq_u32 s88, 0")
    a("s_cbranch_scc0 L_fin")
    a("L_giveup:")
    a("s_barrier")
    a("L_fin:")
    if o["stamp"]:
        st(a, o, 7)
        dump_stamps(a, o, 8, WAVE, nwaves=NW)
    if o["amp"]:
        st(a, o, 7)
        a("s_waitcnt lgkmcnt(0)")
        j = o["amp"]
        a(f"s_sub_u32 s60, s{70+2*j}, s70")
        a(f"s_mul_i32 s60, s60, {o['mult']}")
        a(f"s_add_u32 s60, s60, {o['base']}")
        if not o["amph"]:
            a("s_cmp_ge_u32 s69, 256")
            a("s_cbranch_scc1 L_end")
        a("L_spin:")
        a("s_sleep 2")
        a("s_memrealtime s[86:87]")
        a("s_waitcnt lgkmcnt(0)")
        a("s_sub_u32 s86, s86, s70")
        a("s_cmp_lt_u32 s86, s60")
        a("s_cbranch_scc1 L_spin")
    a("L_end:")
    a("s_endpgm")


def gen9(o):
    a = Asm()
    main = NAME + "_kernel"
    a.lines.append((HEADER + f"; @launch grid=(256,1,1) block=(320,1,1) lds=17408\n").rstrip())
    a('.amdgcn_target "amdgcn-amd-amdhsa--gfx950"')
    a(".text")
    a(f".globl {main}")
    kernel(a, o, main)
    a('.section .rodata,"a"')
    a(".p2align 6")
    kd(a, main, 256)
    return a.text()


DEF = dict(nt="nt", map=1, stamp=0, amp=0, amph=0, mult=0, base=6000, maxspin=200000, mlsleep=16, ldssleep=4,
           pollat=3, fakexcc=0, w=8, budget=160, outsc="", we=0, wfrac=0, sprint=28, fastmask=0xaa, leadsleep=100, wpat='5', x=0, incr=1, alt=1, boff=0, boffn=24, probe=0)
if __name__ == "__main__":
    o = dict(DEF)
    for kv in sys.argv[2:]:
        k, v = kv.split("=")
        assert k in o, k
        o[k] = int(v, 0) if v.lstrip("-").replace("0x", "").isalnum() and v.lstrip("-")[0].isdigit() else v.replace("+", " ")
    open(sys.argv[1], "w").write(gen9(o))
```

```python
import sys
from gen import Asm, vr, srd, HEADER, NAME, C_SC, C_MASK, xlane_sum_all, dump_stamps, kd, ids
from gen4 import sent_check
import hz

NW = 5
PO_BYTES = 8 * 131072
PB_OFF = PO_BYTES
ML_OFF = 2 * PO_BYTES
WS_BYTES = ML_OFF + 8 * 4096
LM, LL, LF, LT, LFLAG = 0x4000, 0x4100, 0x4200, 0x4300, 0x4380
F_ML, F_PROG, F_MODE, F_PB, F_T0 = 0, 4, 8, 12, 16


def st(a, o, idx):
    if o["stamp"] or o["amp"]:
        a(f"s_memrealtime s[{70+2*idx}:{71+2*idx}]")


def kernel(a, o, label):
    nt = o["nt"]
    W = o["w"]
    RN = 32
    VK, VV, OADR, M, X0, X1, FROW, MWR, STA, WAVE, LANE, FLG, C1 = range(1, 14)
    Q0 = 16
    ONE = 16
    RING = 24
    S0 = 152
    W0 = S0 + 32
    T0 = 216
    O0, L0 = 216, 248
    KT = 252

    a(".p2align 8")
    a(f".type {label},@function")
    a(f"{label}:")
    a("s_load_dwordx16 s[4:19], s[0:1], 0")
    a("s_load_dwordx2 s[20:21], s[0:1], 64")
    if o["ctl"]:
        a("s_memrealtime s[86:87]")
    a("s_cmp_ge_u32 s2, 256")
    a("s_cbranch_scc1 L_end")
    a("v_readfirstlane_b32 s69, v0")
    a(f"v_mov_b32 v{FLG}, {LFLAG:#x}")
    a("v_mov_b32 v24, 0")
    a("v_mov_b32 v25, 0")
    a("s_cmp_ge_u32 s69, 256")
    a("s_cbranch_scc0 L_worker")
    a(f"ds_write_b64 v{FLG}, v[24:25]")
    a(f"ds_write_b64 v{FLG}, v[24:25] offset:8")
    if o["ctl"]:
        a(f"ds_write_b64 v{FLG}, v[24:25] offset:16")
    a("s_waitcnt lgkmcnt(0)")
    a("s_barrier")
    a("s_branch L_helper")
    a("L_worker:")
    st(a, o, 0)
    ids(a, o)
    a(f"v_lshrrev_b32 v{WAVE}, 6, v0")
    a(f"v_and_b32 v{LANE}, 63, v0")
    if o["alt"] == 2:
        a(f"v_lshrrev_b32 v{X0}, 7, v0")
        a(f"v_bfe_u32 v{X1}, v0, 6, 1")
        a(f"v_lshlrev_b32 v{X1}, 12, v{X1}")
        a(f"v_lshl_add_u32 v14, v{X0}, 14, v{X1}")
    else:
        a(f"v_lshlrev_b32 v14, 13, v{WAVE}")
    a(f"v_lshl_add_u32 v{VV}, v{LANE}, 4, v14")
    a(f"v_bfe_u32 v{X0}, v0, 4, 2")
    a(f"v_and_b32 v{X1}, 3, v0")
    a(f"v_lshlrev_b32 v{M}, 4, v{X1}")
    a(f"v_lshl_add_u32 v{M}, v{X0}, 6, v{M}")
    a(f"v_bfe_u32 v{X1}, v0, 2, 2")
    a(f"v_lshl_add_u32 v{VK}, v{X1}, 8, v{M}")
    a(f"v_add_u32 v{VK}, v14, v{VK}")
    a(f"v_and_b32 v{X1}, 7, v0")
    a(f"v_lshlrev_b32 v{STA}, 4, v{X1}")
    a(f"v_lshlrev_b32 v{X1}, 8, v{X1}")
    a(f"v_lshl_add_u32 v{X1}, v{X0}, 6, v{X1}")
    a(f"v_bfe_u32 v{X0}, v0, 3, 1")
    a(f"v_lshl_add_u32 v{X1}, v{X0}, 4, v{X1}")
    a(f"v_lshrrev_b32 v{X0}, 3, v0")
    a(f"v_lshl_add_u32 v{STA}, v{X0}, 12, v{STA}")
    if o["alt"] == 1:
        a(f"v_xor_b32 v14, 0x2000, v{VK}")
        a(f"v_xor_b32 v15, 0x2000, v{VV}")
    a("s_lshl_b32 s3, s22, 23")
    a("s_lshl_b32 s40, s23, 18")
    a("s_add_u32 s3, s3, s40")
    a("s_lshl_b32 s41, s22, 11")
    a("s_mov_b32 s26, 0x40000")
    a("s_mov_b32 s27, 0x20000")
    a("s_mov_b32 s34, 0x4000")
    a("s_mov_b32 s35, 0x20000")
    a(f"s_movk_i32 s91, {0x2000 if o['alt'] == 2 else 0x1000:#x}")
    a("s_waitcnt lgkmcnt(0)")
    st(a, o, 1)
    a("s_add_u32 s24, s6, s3")
    a("s_addc_u32 s25, s7, 0")

    def load(n):
        strm, t, i = n >> 6, (n >> 3) & 7, n & 7
        buf = RING + 4 * (n % RN)
        voff, sb = (VK, 24) if strm == 0 else (VV, 28)
        hi = 8192 if o["alt"] == 2 else 4096
        if o["alt"] == 1 and (t & 1):
            voff = 14 + strm
        if t == 0:
            so = "0" if i < 4 else "s91"
        else:
            if i % 4 == 0:
                a(f"s_mov_b32 s90, {t*32768 + (i>>2)*hi:#x}")
            so = "s90"
        a(f"buffer_load_dwordx4 {vr(buf,4)}, v{voff}, s[{sb}:{sb+3}], {so} offen offset:{(i&3)*1024} {nt}")

    load(0)
    a("s_mov_b32 s32, s4")
    a("s_mov_b32 s33, s5")
    a(f"buffer_load_dwordx4 {vr(Q0,4)}, v{X1}, s[32:35], s41 offen")
    a(f"buffer_load_dwordx4 {vr(Q0+4,4)}, v{X1}, s[32:35], s41 offen offset:32")
    W0N = o["w0"] or W
    for n in range(1, W0N):
        load(n)
    if not o["probe"]:
        st(a, o, 2)
    a("s_mov_b32 s36, s20")
    a("s_mov_b32 s37, s21")
    a(f"s_mov_b32 s38, {WS_BYTES:#x}")
    a("s_mov_b32 s39, 0x20000")
    a("s_lshl_b32 s92, s22, 17")
    a("s_lshl_b32 s95, s23, 7")
    a("s_add_u32 s92, s92, s95")
    for r in range(4):
        a(f"v_mov_b32 v{L0+r}, -1")
    a(f"buffer_store_dwordx4 {vr(L0,4)}, v{STA}, s[36:39], s92 offen")
    a("s_cmp_eq_u32 s69, 64")
    a("s_cbranch_scc0 L_side_done")
    srd(a, 48, 10, 2048)
    a("s_lshl_b32 s61, s22, 8")
    a(f"buffer_load_dwordx4 {vr(KT,4)}, v{M}, s[48:51], s61 offen")
    a("L_side_done:")
    a("s_add_u32 s28, s8, s3")
    a("s_addc_u32 s29, s9, 0")
    a("s_mov_b32 s30, 0x40000")
    a("s_mov_b32 s31, 0x20000")
    a("s_mov_b32 s101, 0xfffffffe")
    a(f"s_mov_b32 s68, {C_SC:#x}")
    a("s_mov_b32 s42, 0x05040100")
    a("s_mov_b32 s43, 0x07060302")
    if o["we"]:
        a("s_getreg_b32 s57, hwreg(HW_REG_XCC_ID, 0, 3)")
        a(f"s_lshr_b32 s57, {o['fastmask']:#x}, s57")
        a("s_and_b32 vcc_lo, s57, 1")
        a("s_mov_b32 vcc_hi, 0")
    a(f"v_mov_b32 v{C1}, 1")
    a(f"v_and_b32 v{MWR}, 15, v0")
    a(f"v_lshlrev_b32 v{MWR}, 4, v{MWR}")
    a(f"v_lshl_add_u32 v{MWR}, v{WAVE}, 2, v{MWR}")
    a(f"v_lshrrev_b32 v{FROW}, 5, v0")
    a(f"v_lshlrev_b32 v{FROW}, 4, v{FROW}")
    a(f"v_and_b32 v{OADR}, 7, v0")
    a(f"v_mul_u32_u24 v{OADR}, 528, v{OADR}")
    a(f"v_lshl_add_u32 v{OADR}, v{WAVE}, 12, v{OADR}")
    a(f"v_bfe_u32 v{X0}, v0, 4, 2")
    a(f"v_lshl_add_u32 v{OADR}, v{X0}, 7, v{OADR}")
    a(f"v_and_b32 v{X0}, 8, v0")
    a(f"v_lshlrev_b32 v{X0}, 3, v{X0}")
    a(f"v_xor_b32 v{OADR}, v{X0}, v{OADR}")

    a("s_barrier")
    items = []
    def item(lines, need=-1, cost=None, frees=None):
        if isinstance(lines, str):
            lines = [lines]
        if cost is None:
            cost = sum(10 if l.startswith("v_mfma") else 8 if l.startswith("v_exp") else 4 for l in lines)
        items.append((lines, cost, need, frees))
    def sub(fn, *args, **kw):
        b = Asm()
        fn(b, *args, **kw)
        return [l.strip() for l in b.lines]
    def flagl(off):
        return ["s_mov_b64 exec, 1", f"ds_add_u32 v{FLG}, v{C1} offset:{off}", "s_mov_b64 exec, -1"]
    def KB(j):
        return RING + 4 * (j % RN)
    for j in range(64 + 5):
        need = max(min(j, 63), 1)
        if j < 64:
            i = j % 8
            item(f"v_mfma_f32_16x16x32_bf16 {vr(T0+4*i+2,4)}, {vr(KB(j),4)}, {vr(Q0,4)}, 0", need)
        if 0 <= j - 2 < 64:
            i = (j - 2) % 8
            item(f"v_mfma_f32_16x16x32_bf16 {vr(T0+4*i,4)}, {vr(KB(j-2),4)}, {vr(Q0+4,4)}, {vr(T0+4*i,4)}", need, frees=j - 2)
        jj = j - 5
        if 0 <= jj < 64:
            i = jj % 8
            item(f"v_add_f32_dpp v{S0+jj}, v{T0+4*i+3}, v{T0+4*i+2} row_ror:8 row_mask:0xf bank_mask:0xf", need)
            if jj == 1:
                item(f"v_max_f32 v{M}, v{S0}, v{S0+1}", need)
            elif jj % 2 == 1:
                item(f"v_max3_f32 v{M}, v{S0+jj-1}, v{S0+jj}, v{M}", need)
        if j == W0N + 2:
            item(["s_cmp_eq_u32 s69, 64", "s_cbranch_scc0 L_notree", ";SKIP_BEGIN",
                  f"v_mfma_f32_16x16x32_bf16 {vr(W0+2,4)}, {vr(KT,4)}, {vr(Q0,4)}, 0",
                  f"v_mfma_f32_16x16x32_bf16 {vr(W0,4)}, {vr(KT,4)}, {vr(Q0+4,4)}, {vr(W0,4)}",
                  f"v_and_b32 v{X0}, 15, v0", f"v_lshlrev_b32 v{X0}, 2, v{X0}",
                  f"v_add_f32_dpp v{X1}, v{W0+3}, v{W0+2} row_ror:8 row_mask:0xf bank_mask:0xf",
                  f"ds_write_b32 v{X0}, v{X1} offset:{LT}", ";SKIP_END", "L_notree:"], need, cost=10)
    if o["stamp"] or o["amp"]:
        item(sub(st, o, 3), 63)
    xl = [l for l in sub(xlane_sum_all, [M], X0, [16, 32], op="v_max_f32") if not l.startswith("s_nop")]
    item(xl, 63)
    item([f"v_mov_b32 v{ONE+r}, 0x3f803f80" for r in range(4)] + [f"v_mul_f32 v{M}, s68, v{M}",
          f"ds_write_b32 v{MWR}, v{M} offset:{LM}"], 63)
    for t in range(8):
        for i in range(8):
            item(f"v_fma_f32 v{S0+8*t+i}, v{S0+8*t+i}, s68, -v{M}", 63)
        for i in range(8):
            item(f"v_exp_f32 v{S0+8*t+i}, v{S0+8*t+i}", 63)
        if t > 0:
            for k in range(4 * t - 4, 4 * t):
                item(f"v_cvt_pk_bf16_f32 v{S0+k}, v{S0+2*k}, v{S0+2*k+1}", 63)
        if t > 1:
            c = "0" if t == 2 else vr(L0, 4)
            item(f"v_mfma_f32_16x16x32_bf16 {vr(L0,4)}, {vr(ONE,4)}, {vr(S0+4*(t-2),4)}, {c}", 63)
    for k in range(28, 32):
        item(f"v_cvt_pk_bf16_f32 v{S0+k}, v{S0+2*k}, v{S0+2*k+1}", 63)
    item(f"v_mfma_f32_16x16x32_bf16 {vr(L0,4)}, {vr(ONE,4)}, {vr(S0+24,4)}, {vr(L0,4)}", 63)
    item(f"v_mfma_f32_16x16x32_bf16 {vr(L0,4)}, {vr(ONE,4)}, {vr(S0+28,4)}, {vr(L0,4)}", 63)
    item([f"v_lshlrev_b32 v{X1}, 4, v0", f"ds_write_b32 v{MWR}, v{L0} offset:{LL}"] + flagl(F_ML), 63, cost=60)
    if o["stamp"] or o["amp"]:
        item(sub(st, o, 4), 63)
    for t in range(8):
        if t == o["pollat"] or t == 7:
            item(flagl(F_PROG), 63 + 8 * t)
        def mf(j):
            c = "0" if t == 0 else vr(O0 + 4 * j, 4)
            return f"v_mfma_f32_16x16x32_bf16 {vr(O0+4*j,4)}, {vr(W0+4*j,4)}, {vr(S0+4*t,4)}, {c}"
        for m in range(4):
            n0 = 64 + 8 * t + 2 * m
            pm = {}
            for u in range(4):
                for half in range(2):
                    j = 2 * u + half
                    pm[j] = f"v_perm_b32 v{W0+4*j+m}, v{KB(n0+1)+u}, v{KB(n0)+u}, s{42+half}"
            if t == 7 and m == 3:
                order = [0, 4, 1, 5, 2, 6, 3, 7]
                ls = [pm[order[0]], pm[order[1]], pm[order[2]]]
                for x in range(8):
                    ls.append(mf(order[x]))
                    if x + 3 < 8:
                        ls.append(pm[order[x + 3]])
                item(ls, n0 + 1, frees=n0 + 1)
            else:
                item([pm[j] for j in range(8)], n0 + 1, frees=n0 + 1)
        if t < 7:
            for j in range(8):
                item(mf(j), 64 + 8 * t + 7, cost=16)
        if t == 5:
            item([f"v_xor_b32 v{S0+j}, {j<<4}, v{OADR}" for j in range(1, 4)], 64 + 8 * t + 7)
    def dith(n):
        k = (n - o["cp0"]) // o["cpstep"]
        seq = {1: [0], 2: [-1, 1], 3: [-1, 1, 0], 4: [-1, 1 / 3, 1, -1 / 3]}[o["dn"]]
        return o["dith"] * seq[k % len(seq)]
    start = len(a.lines)
    q = 0
    freed = -1
    avail = -1
    for n in range(W0N, 128):
        assert n - RN <= freed, (n, freed)
        we = o["we"]
        if we and n < 128 - o["sprint"] and (o["wfrac"] == 0 or n % o["wfrac"] != 0):
            a(f"s_cbranch_vccnz L_th{n}")
            a(f"s_waitcnt vmcnt({we-1})")
            a(f"L_th{n}:")
        wn = W
        if o["ctl"] and o["cp0"] <= n < 128 - o["sprint"]:
            if (n - o["cp0"]) % o["cpstep"] == 0:
                a("s_waitcnt lgkmcnt(0)")
                a(f"v_readfirstlane_b32 s60, v{KT}")
                a("s_nop 1")
                a("s_sub_u32 s61, s62, s60")
                a("s_cmp_lg_u32 s60, 0")
                a("s_cselect_b32 s61, s61, 0")
                a(f"s_cmp_gt_u32 s61, {int(round(o['c0'] + n * o['slope'] / 10.0 + dith(n)))}")
                a("s_cselect_b64 vcc, -1, 0")
            a(f"s_cbranch_vccnz L_th{n}")
            a(";SKIP_BEGIN")
            a(f"s_waitcnt vmcnt({int(str(o['wpat'])[0])-1})")
            a(";SKIP_END")
            a(f"L_th{n}:")
            wn = o["wb"]
        elif o["wpat"] != "" and n < 128 - o["sprint"]:
            pat = str(o["wpat"])
            wn = int(pat[n % len(pat)])
            if o["ramp"] != "" and n - W0N < len(str(o["ramp"])):
                wn = int(str(o["ramp"])[n - W0N])
        a(f"s_waitcnt vmcnt({wn-1})")
        if n == o["probe"]:
            st(a, o, 2)
        load(n)
        if o["ctl"] and o["cp0"] <= n + 1 < 128 - o["sprint"] and (n + 1 - o["cp0"]) % o["cpstep"] == 0:
            a("s_memrealtime s[62:63]")
            a(f"ds_read_b32 v{KT}, v{FLG} offset:{F_T0}")
        avail = max(avail, n - wn)
        budget = o["budget"]
        while q < len(items) and items[q][2] <= avail and budget > 0:
            for l in items[q][0]:
                a(l)
            budget -= items[q][1]
            if items[q][3] is not None:
                freed = items[q][3]
            q += 1
    while q < len(items):
        if items[q][2] > avail:
            avail = items[q][2]
            a(f"s_waitcnt vmcnt({127-avail})")
        for l in items[q][0]:
            a(l)
        q += 1
    st(a, o, 5)
    for j in range(4):
        for r in range(4):
            a(f"v_mov_b32_dpp v{O0+4*j+r}, v{O0+4*(j+4)+r} row_shr:8 row_mask:0xf bank_mask:0xc")
        a(f"ds_write_b128 v{OADR if j == 0 else S0+j}, {vr(O0+4*j,4)}")
    a.lines[start:] = hz.fix(a.lines[start:])
    a("s_waitcnt lgkmcnt(0)")
    a("s_barrier")
    OR, FR = RING, RING + 16
    a(f"ds_read_b128 {vr(FR,4)}, v{FROW} offset:{LF}")
    for w in range(4):
        a(f"ds_read_b128 {vr(OR+4*w,4)}, v{X1} offset:{4096*w}")
    a(f"ds_read_b32 v{X0}, v{FLG} offset:{F_MODE}")
    fine = not (o["stamp"] or o["amp"])
    for w in range(4):
        a(f"s_waitcnt lgkmcnt({4-w})" if fine else "s_waitcnt lgkmcnt(0)")
        for r in range(4):
            if w == 0:
                a(f"v_mul_f32 v{OR+r}, v{FR}, v{OR+r}")
            else:
                a(f"v_fmac_f32 v{OR+r}, v{FR+w}, v{OR+4*w+r}")
    for r in range(4):
        a(f"v_min_u32 v{OR+r}, s101, v{OR+r}")
    a(f"buffer_store_dwordx4 {vr(OR,4)}, v{STA}, s[36:39], s92 offen")
    st(a, o, 6)
    a("s_waitcnt lgkmcnt(0)")
    a(f"v_readfirstlane_b32 s94, v{X0}")
    a(f"s_add_u32 s92, s92, {PB_OFF:#x}")
    a("s_nop 1")
    a("s_cmp_eq_u32 s94, 1")
    a("s_cbranch_scc1 L_fin")
    a(f"buffer_store_dwordx4 {vr(OR,4)}, v{STA}, s[36:39], s92 offen sc1")
    a("s_waitcnt vmcnt(0)")
    for l in flagl(F_PB):
        a(l)
    a("s_branch L_fin")

    a("L_helper:")
    if o["x"] == 1:
        a("v_mov_b32 v24, 1")
        a(f"ds_write_b32 v{FLG}, v24 offset:{F_MODE}")
        a("s_waitcnt lgkmcnt(0)")
        a("s_endpgm")
    B = RING
    mk, stv, vt, om, Z0, OA, ox, Mx, L, FV, ROW, FA = (B + i for i in range(2, 14))
    X, ML, F, O, T, Z, OB, MLA, VTA, BP, X2 = B + 16, B + 32, B + 36, B + 44, B + 48, B + 56, B + 60, B + 64, B + 65, B + 66, B + 72
    st(a, o, 0)
    ids(a, o)
    a(f"v_lshrrev_b32 v{WAVE}, 6, v0")
    a(f"v_and_b32 v{LANE}, 63, v0")
    a("s_lshr_b32 s40, s23, 2")
    a("s_and_b32 s41, s23, 3")
    a("s_lshl_b32 s100, s22, 5")
    a("s_lshl_b32 s65, s22, 12")
    a(f"s_add_u32 s65, s65, {ML_OFF:#x}")
    a("s_lshl_b32 s95, s23, 7")
    a("s_add_u32 s93, s65, s95")
    a("s_lshl_b32 s95, s40, 4")
    a("s_add_u32 s65, s65, s95")
    a("s_lshl_b32 s60, s22, 3")
    a("s_add_u32 s60, s60, s40")
    a("s_lshl_b32 s60, s60, 8")
    a("s_lshl_b32 s61, s22, 8")
    a("s_lshl_b32 s67, s41, 6")
    a("s_add_u32 s63, s61, s67")
    a("s_add_u32 s66, s60, s67")
    a("s_lshl_b32 s64, s22, 17")
    a("s_lshl_b32 s67, s23, 12")
    a("s_add_u32 s64, s64, s67")
    a("s_lshr_b32 s62, s22, 2")
    a("s_lshl_b32 s62, s62, 4")
    for d, n in ((36, WS_BYTES), (44, 0x4000), (96, 256)):
        a(f"s_mov_b32 s{d+2}, {n:#x}")
        a(f"s_mov_b32 s{d+3}, 0x20000")
    a(f"v_mov_b32 v{Z0}, 0")
    a(f"v_and_b32 v{X0}, 7, v{LANE}")
    a(f"v_lshlrev_b32 v{MLA}, 4, v{X0}")
    a(f"v_xor_b32 v{OA}, s40, v{X0}")
    a(f"v_lshlrev_b32 v{OA}, 1, v{OA}")
    a(f"v_bfe_u32 v{X1}, v{LANE}, 3, 2")
    a(f"v_lshl_add_u32 v{VTA}, v{X1}, 4, v{OA}")
    a(f"v_bfe_u32 v{X1}, v{LANE}, 4, 1")
    a(f"v_lshl_add_u32 v{OA}, v{X1}, 5, v{OA}")
    a(f"v_bfe_u32 v{X1}, v{LANE}, 5, 1")
    a(f"v_lshl_add_u32 v{OA}, v{X1}, 4, v{OA}")
    a(f"v_lshrrev_b32 v{X1}, 3, v{LANE}")
    a(f"v_lshlrev_b32 v{ox}, 9, v{X1}")
    a(f"v_lshl_add_u32 v{ox}, v{X0}, 4, v{ox}")
    a(f"v_lshlrev_b32 v{BP}, 4, v{X1}")
    a(f"v_and_b32 v{om}, 31, v{LANE}")
    a(f"v_lshlrev_b32 v{om}, 7, v{om}")
    a(f"v_and_b32 v{ROW}, 15, v{LANE}")
    a(f"v_lshlrev_b32 v{ROW}, 4, v{ROW}")
    a(f"s_mov_b32 s58, {o['maxspin']}")
    a("s_getreg_b32 s57, hwreg(HW_REG_XCC_ID, 0, 4)")
    if o["fakexcc"]:
        a("s_lshr_b32 s57, s2, 3")
        a("s_and_b32 s57, s57, 1")
    a("s_waitcnt lgkmcnt(0)")
    st(a, o, 1)
    a("s_load_dword s56, s[14:15], 0")
    a("s_add_u32 s12, s12, s63")
    a("s_addc_u32 s13, s13, 0")
    a("s_load_dwordx8 s[24:31], s[12:13], 0")
    a("s_load_dwordx8 s[48:55], s[12:13], 32")
    a("s_mov_b32 s36, s20")
    a("s_mov_b32 s37, s21")
    a("s_mov_b32 s44, s16")
    a("s_mov_b32 s45, s17")
    a("s_mov_b32 s96, s18")
    a("s_mov_b32 s97, s19")
    a("s_cmp_eq_u32 s23, 0")
    a("s_cbranch_scc0 L_nolead")
    for r in range(4):
        a(f"v_mov_b32 v{Z+r}, -1")
    a(f"v_lshlrev_b32 v{FA}, 4, v{LANE}")
    if o["ctl"]:
        a("s_or_b32 s94, s86, 1")
        a(f"v_mov_b32 v{FV}, s94")
    else:
        a(f"v_mov_b32 v{FV}, 1")
    a("s_setprio 3")
    for k in range(4):
        a(f"buffer_store_dwordx4 {vr(Z,4)}, v{FA}, s[36:39], s93 offen offset:{1024*k} sc1")
    a("s_waitcnt vmcnt(0)")
    a("s_mov_b64 exec, 1")
    a(f"buffer_store_dword v{FV}, v{Z0}, s[96:99], s100 offen sc1")
    a("s_mov_b64 exec, -1")
    a("s_setprio 0")
    a("L_nolead:")
    a("s_waitcnt lgkmcnt(0)")
    for i in range(16):
        a(f"v_writelane_b32 v{X0}, s{24+i if i < 8 else 40+i}, {i}")
    a(f"v_and_b32 v{X1}, 0x3c, v{VTA}")
    a(f"ds_bpermute_b32 v{vt}, v{X1}, v{X0}")
    a(f"v_and_b32 v{X1}, 2, v{VTA}")
    a(f"v_lshlrev_b32 v{X1}, 3, v{X1}")
    a("s_lshr_b32 s56, s56, s62")
    a("s_lshl_b32 s56, s56, 16")
    a(f"v_sub_f32 v{mk}, 1.0, s56")
    a(f"v_mul_f32 v{mk}, {C_MASK:#x}, v{mk}")
    a("s_lshl_b32 s94, s40, 2")
    a("s_waitcnt lgkmcnt(0)")
    a(f"v_lshrrev_b32 v{vt}, v{X1}, v{vt}")
    a(f"v_lshlrev_b32 v{vt}, 16, v{vt}")
    a(f"v_mov_b32 v{VTA}, s94")
    a("s_mov_b32 s101, 0xfffffffe")

    def ldsspin(off, val, lab, out):
        a(f"{lab}:")
        a("s_sub_u32 s58, s58, 1")
        a(f"s_cbranch_scc1 {out}")
        a(f"s_sleep {o['ldssleep']}")
        a(f"ds_read_b32 v{X0}, v{FLG} offset:{off}")
        a("s_waitcnt lgkmcnt(0)")
        a(f"v_readfirstlane_b32 s94, v{X0}")
        a("s_nop 2")
        a(f"s_cmp_ge_u32 s94, {val}")
        a(f"s_cbranch_scc0 {lab}")

    def dbgword(off):
        a(f"buffer_load_dword v{FV}, v{Z0}, s[96:99], s100 offen offset:{off} sc1")
        a("s_waitcnt vmcnt(0)")
        a(f"v_readfirstlane_b32 s94, v{FV}")
        a("s_nop 2")

    if o["x"] == 4:
        ldsspin(F_PROG, 8, "L_spx", "L_giveup")
        a("v_mov_b32 v24, 1")
        a(f"ds_write_b32 v{FLG}, v24 offset:{F_MODE}")
        a("s_waitcnt lgkmcnt(0)")
        a("s_endpgm")
    if o["ctl"]:
        a(f"v_and_b32 v{FA}, 7, v{LANE}")
        a(f"v_lshlrev_b32 v{FA}, 5, v{FA}")
        a(f"s_sleep {o['leadsleep']}")
        a("L_lead:")
        a("s_sub_u32 s58, s58, 1")
        a("s_cbranch_scc1 L_giveup")
        a(f"s_sleep {o['leadsleep2']}")
        a("s_setprio 3")
        a(f"buffer_load_dword v{FV}, v{FA}, s[96:99], 0 offen sc1")
        a("s_waitcnt vmcnt(0)")
        a("s_setprio 0")
        a(f"v_cmp_eq_u32 vcc, 0, v{FV}")
        a("s_cbranch_vccnz L_lead")
        a(f"v_subrev_u32 v{FV}, s86, v{FV}")
        a("s_nop 1")
        if o["t0mean"]:
            xlane_sum_all(a, [FV], T, [1, 2, 4], op="v_add_u32")
            a(f"v_ashrrev_i32 v{FV}, 3, v{FV}")
        else:
            xlane_sum_all(a, [FV], T, [1, 2, 4], op="v_min_i32")
        a(f"v_add_u32 v{FV}, s86, v{FV}")
        a(f"v_or_b32 v{FV}, 1, v{FV}")
        a(f"ds_write_b32 v{FLG}, v{FV} offset:{F_T0}")
    else:
        a("L_lead:")
        a("s_sub_u32 s58, s58, 1")
        a("s_cbranch_scc1 L_giveup")
        a(f"s_sleep {o['leadsleep']}")
        a("s_setprio 3")
        dbgword(0)
        a("s_setprio 0")
        a("s_cmp_eq_u32 s94, 0")
        a("s_cbranch_scc1 L_lead")
    st(a, o, 2)
    ldsspin(F_ML, 4, "L_sp1", "L_giveup")
    a(f"ds_read_b128 {vr(T,4)}, v{ROW} offset:{LM}")
    a(f"ds_read_b128 {vr(T+4,4)}, v{ROW} offset:{LL}")
    a(f"ds_read_b32 v{stv}, v{VTA} offset:{LT}")
    a("s_waitcnt lgkmcnt(0)")
    a(f"v_max3_f32 v{Z}, v{T}, v{T+1}, v{T+2}")
    a(f"v_max_f32 v{Z}, v{T+3}, v{Z}")
    for w in range(4):
        a(f"v_sub_f32 v{T+w}, v{T+w}, v{Z}")
    for w in range(4):
        a(f"v_exp_f32 v{T+w}, v{T+w}")
    a(f"v_mov_b32 v{Z+2}, s57")
    a(f"v_mov_b32 v{Z+3}, 0")
    a(f"ds_write_b128 v{ROW}, {vr(T,4)} offset:{LF}")
    a(f"v_mul_f32 v{Z+1}, v{T}, v{T+4}")
    for w in range(1, 4):
        a(f"v_fmac_f32 v{Z+1}, v{T+w}, v{T+4+w}")
    a(f"v_min_u32 v{Z}, s101, v{Z}")
    a(f"v_min_u32 v{Z+1}, s101, v{Z+1}")
    a("s_setprio 3")
    a("s_mov_b64 exec, 0xff")
    a(f"buffer_store_dwordx4 {vr(Z,4)}, v{MLA}, s[36:39], s93 offen sc1")
    a("s_mov_b64 exec, -1")
    a("s_setprio 0")
    a(f"v_mul_f32 v{stv}, {C_SC:#x}, v{stv}")
    a(f"v_add_f32 v{stv}, v{stv}, v{mk}")
    if o["x"] == 2:
        a("v_mov_b32 v24, 1")
        a(f"ds_write_b32 v{FLG}, v24 offset:{F_MODE}")
        a("s_waitcnt lgkmcnt(0)")
        a("s_endpgm")
    st(a, o, 3)
    ldsspin(F_PROG, 1, "L_sp2", "L_giveup")
    st(a, o, 4)
    a("s_setprio 3")
    a("s_mov_b32 s88, 0")
    a("L_mlpoll:")
    a("s_sub_u32 s58, s58, 1")
    a("s_cbranch_scc1 L_giveup2")
    a(f"buffer_load_dwordx4 {vr(ML,4)}, v{om}, s[36:39], s65 offen sc1")
    a("s_waitcnt vmcnt(0)")
    a(f"v_max3_u32 v{X0}, v{ML}, v{ML+1}, v{ML+2}")
    a(f"v_cmp_eq_u32 vcc, -1, v{X0}")
    a("s_cbranch_vccz L_mlgot")
    a("s_cmp_eq_u32 s88, 0")
    a("s_cbranch_scc0 L_mlpoll")
    a(f"s_sleep {o['mlsleep']}")
    a(f"ds_read_b32 v{X0}, v{FLG} offset:{F_PROG}")
    a("s_waitcnt lgkmcnt(0)")
    a(f"v_readfirstlane_b32 s95, v{X0}")
    a("s_nop 2")
    a("s_cmp_le_u32 s95, 4")
    a("s_cbranch_scc1 L_mlpoll")
    a("s_barrier")
    a("s_mov_b32 s88, 1")
    a("s_branch L_mlpoll")
    a("L_mlgot:")
    a(f"v_cmp_ne_u32 vcc, s57, v{ML+2}")
    a(f"v_max_f32 v{Mx}, v{ML}, v{stv}")
    a("s_nop 0")
    a("s_cmp_eq_u64 vcc, 0")
    a("s_cselect_b32 s56, 1, 0")
    a(f"v_mov_b32 v{X1}, s56")
    a(f"ds_write_b32 v{FLG}, v{X1} offset:{F_MODE}")
    xlane_sum_all(a, [Mx], T, [1, 2, 4, 8, 16], op="v_max_f32")
    a(f"v_sub_f32 v{F+5}, v{ML}, v{Mx}")
    a(f"v_sub_f32 v{F+4}, v{stv}, v{Mx}")
    a(f"v_exp_f32 v{F+5}, v{F+5}")
    a(f"v_exp_f32 v{F+4}, v{F+4}")
    a("s_nop 0")
    a(f"v_mul_f32 v{L}, v{F+5}, v{ML+1}")
    a("s_nop 1")
    xlane_sum_all(a, [L], T, [1, 2, 4, 8, 16])
    a(f"v_add_f32 v{L}, v{L}, v{F+4}")
    a(f"v_rcp_f32 v{L}, v{L}")
    a("s_nop 0")
    a(f"v_mul_f32 v{F+5}, v{F+5}, v{L}")
    a(f"v_mul_f32 v{F+4}, v{F+4}, v{L}")
    for k in range(4):
        a(f"ds_bpermute_b32 v{F+k}, v{BP}, v{F+5} offset:{4*k}")
    a(f"v_mul_f32 v{X0}, v{F+4}, v{vt}")
    for r in range(4):
        a(f"v_mov_b32 v{OB+r}, 0")
    for r in range(4):
        a(f"s_mov_b64 exec, {0xff << (8*r):#x}") if r < 3 else a("s_mov_b32 exec_lo, 0xff000000")
        a(f"v_mov_b32 v{OB+r}, v{X0}")
    a("s_mov_b64 exec, -1")
    a("s_waitcnt lgkmcnt(0)")
    if o["x"] == 3:
        a("s_endpgm")
    st(a, o, 5)
    a("s_cmp_eq_u32 s56, 1")
    a("s_cbranch_scc1 L_poll")
    a("s_cmp_eq_u32 s88, 0")
    a("s_cbranch_scc0 L_postbar")
    a("s_barrier")
    a("s_mov_b32 s88, 1")
    a("L_postbar:")
    ldsspin(F_PB, 4, "L_sp4", "L_fin")
    a(f"v_mov_b32 v{X0}, 1")
    a("s_mov_b64 exec, 1")
    a(f"buffer_atomic_add v{X0}, v{Z0}, s[96:99], s100 offen offset:4 sc1")
    a("s_mov_b64 exec, -1")
    a("L_c2:")
    a("s_sub_u32 s58, s58, 1")
    a("s_cbranch_scc1 L_fin")
    dbgword(4)
    a("s_cmp_ge_u32 s94, 32")
    a("s_cbranch_scc0 L_c2")
    a(f"s_add_u32 s64, s64, {PB_OFF:#x}")

    def finalmath(b, Xb):
        for r in range(4):
            b(f"v_fma_f32 v{O+r}, v{F}, v{Xb+r}, v{OB+r}")
        for k in range(1, 4):
            for r in range(4):
                b(f"v_fmac_f32 v{O+r}, v{F+k}, v{Xb+4*k+r}")
        b(f"v_permlane32_swap_b32 v{O}, v{O+1}")
        b(f"v_permlane32_swap_b32 v{O+2}, v{O+3}")
        b(f"v_add_f32 v{O}, v{O}, v{O+1}")
        b(f"v_add_f32 v{O+2}, v{O+2}, v{O+3}")
        b(f"v_permlane16_swap_b32 v{O}, v{O+2}")
        b(f"v_add_f32 v{O}, v{O}, v{O+2}")
        b(f"v_add_f32_dpp v{O}, v{O}, v{O} row_ror:8 row_mask:0xf bank_mask:0xf")
        b(f"v_cvt_pk_bf16_f32 v{O}, v{O}, v{O}")
    if o["incr"]:
        a("L_poll:")
        for k in range(4):
            a(f"s_mov_b64 s[{24+2*k}:{25+2*k}], -1")
        a("L_poll2:")
        a("s_sub_u32 s58, s58, 1")
        a("s_cbranch_scc1 L_giveup2")
        for k in range(4):
            a(f"s_mov_b64 exec, s[{24+2*k}:{25+2*k}]")
            a(f"s_cbranch_execz L_pk{k}")
            a(f"buffer_load_dwordx4 {vr(X+4*k,4)}, v{ox}, s[36:39], s64 offen offset:{128*k} sc1")
            a(f"L_pk{k}:")
        a("s_mov_b64 exec, -1")
        a("s_waitcnt vmcnt(0)")
        b = Asm()
        for k in range(4):
            b(f"v_max3_u32 v{T+k}, v{X+4*k}, v{X+4*k+1}, v{X+4*k+2}")
        for k in range(4):
            b(f"v_max_u32 v{T+k}, v{T+k}, v{X+4*k+3}")
        for k in range(4):
            b(f"v_cmp_eq_u32 s[{24+2*k}:{25+2*k}], -1, v{T+k}")
        for r in range(4):
            b(f"v_fma_f32 v{O+r}, v{F}, v{X+r}, v{OB+r}")
        b("s_or_b64 s[32:33], s[24:25], s[26:27]")
        b("s_or_b64 s[34:35], s[28:29], s[30:31]")
        b("s_or_b64 s[32:33], s[32:33], s[34:35]")
        b("s_cselect_b32 s94, s88, 0")
        b("s_cmp_eq_u32 s94, 1")
        b("s_cbranch_scc1 L_poll3" if o["boff"] else "s_cbranch_scc1 L_poll2")
        c = Asm()
        finalmath(c, X)
        b.lines += c.lines[4:]
        a.lines += hz.fix(b.lines)
        a("s_cmp_eq_u64 s[32:33], 0")
        a("s_cbranch_scc1 L_done")
        a("s_barrier")
        a("s_mov_b32 s88, 1")
        st(a, o, 6)
        a("s_branch L_poll2")
        if o["boff"]:
            a("L_poll3:")
            a("s_bcnt1_i32_b64 s94, s[32:33]")
            a(f"s_cmp_le_u32 s94, {o['boffn']}")
            a("s_cbranch_scc1 L_poll2")
            a(f"s_sleep {o['boff']}")
            a("s_branch L_poll2")
    else:
        def pollld(Xb):
            for k in range(4):
                a(f"buffer_load_dwordx4 {vr(Xb+4*k,4)}, v{ox}, s[36:39], s64 offen offset:{128*k} sc1")
        def pollmath(Xb):
            b = Asm()
            sent_check(b, Xb, 16, X0, X1)
            finalmath(b, Xb)
            a.lines += hz.fix(b.lines)
        a("L_poll:")
        pollld(X)
        a("L_poll2:")
        a("s_sub_u32 s58, s58, 1")
        a("s_cbranch_scc1 L_giveup2")
        pollld(X2)
        a("s_waitcnt vmcnt(4)")
        pollmath(X)
        a("s_cbranch_vccz L_done")
        pollld(X)
        a("s_waitcnt vmcnt(4)")
        pollmath(X2)
        a("s_cbranch_vccz L_done")
        a("s_cmp_eq_u32 s88, 0")
        a("s_cbranch_scc0 L_poll2")
        a("s_waitcnt vmcnt(0)")
        a("s_barrier")
        a("s_mov_b32 s88, 1")
        st(a, o, 6)
        a("s_branch L_poll")
    a("L_done:")
    a(f"buffer_store_short v{O}, v{OA}, s[44:47], s66 offen {o['outsc']}")
    a("L_giveup2:")
    a("s_cmp_eq_u32 s88, 0")
    a("s_cbranch_scc0 L_fin")
    a("L_giveup:")
    a("s_barrier")
    a("L_fin:")
    if o["stamp"]:
        st(a, o, 7)
        dump_stamps(a, o, 8, WAVE, nwaves=NW)
    if o["amp"]:
        st(a, o, 7)
        a("s_waitcnt lgkmcnt(0)")
        j = o["amp"]
        a(f"s_sub_u32 s60, s{70+2*j}, s70")
        a(f"s_mul_i32 s60, s60, {o['mult']}")
        a(f"s_add_u32 s60, s60, {o['base']}")
        if not o["amph"]:
            a("s_cmp_ge_u32 s69, 256")
            a("s_cbranch_scc1 L_end")
        a("L_spin:")
        a("s_sleep 2")
        a("s_memrealtime s[88:89]")
        a("s_waitcnt lgkmcnt(0)")
        a("s_sub_u32 s88, s88, s70")
        a("s_cmp_lt_u32 s88, s60")
        a("s_cbranch_scc1 L_spin")
    a("L_end:")
    a("s_endpgm")


def gen9(o):
    a = Asm()
    main = NAME + "_kernel"
    a.lines.append((HEADER + f"; @launch grid=(256,1,1) block=(320,1,1) lds=17408\n").rstrip())
    a('.amdgcn_target "amdgcn-amd-amdhsa--gfx950"')
    a(".text")
    a(f".globl {main}")
    kernel(a, o, main)
    a('.section .rodata,"a"')
    a(".p2align 6")
    kd(a, main, 256)
    return a.text()


DEF = dict(nt="nt", map=1, stamp=0, amp=0, amph=0, mult=0, base=6000, maxspin=200000, mlsleep=16, ldssleep=4,
           pollat=3, fakexcc=0, w=8, budget=160, outsc="", we=0, wfrac=0, sprint=28, fastmask=0xaa, leadsleep=100, wpat='5', x=0, incr=1, alt=1, boff=0, boffn=24, probe=0, w0=0, ramp='', ctl=0, cp0=32, cpstep=8, c0=50, slope=138, wb=8, leadsleep2=16, dith=0, dn=2, t0mean=1)
if __name__ == "__main__":
    o = dict(DEF)
    for kv in sys.argv[2:]:
        k, v = kv.split("=")
        assert k in o, k
        o[k] = int(v, 0) if v.lstrip("-").replace("0x", "").isalnum() and v.lstrip("-")[0].isdigit() else v.replace("+", " ")
    open(sys.argv[1], "w").write(gen9(o))
```

```python
import sys
from gen import Asm, vr, srd, HEADER, NAME, C_SC, C_MASK, xlane_sum_all, dump_stamps, kd, ids
from gen4 import sent_check
import hz

NW = 5
DOC = "\n"
PO_BYTES = 8 * 131072
PB_OFF = PO_BYTES
ML_OFF = 2 * PO_BYTES
WS_BYTES = ML_OFF + 8 * 4096
LM, LL, LF, LT, LFLAG = 0x4000, 0x4100, 0x4200, 0x4300, 0x4380
F_ML, F_PROG, F_MODE, F_PB, F_T0 = 0, 4, 8, 12, 16


def st(a, o, idx):
    if o["stamp"] or o["amp"]:
        a(f"s_memrealtime s[{70+2*idx}:{71+2*idx}]")


def pkfma(d, x, f, c):
    fp, hi = f & ~1, f & 1
    if c is None:
        return f"v_pk_mul_f32 {vr(d,2)}, {vr(x,2)}, {vr(fp,2)} op_sel:[0,{hi}] op_sel_hi:[1,{hi}]"
    return f"v_pk_fma_f32 {vr(d,2)}, {vr(x,2)}, {vr(fp,2)}, {vr(c,2)} op_sel:[0,{hi},0] op_sel_hi:[1,{hi},1]"


def kernel(a, o, label):
    nt = o["nt"]
    W = o["w"]
    RN = 32
    VK, VV, OADR, M, X0, X1, FROW, MWR, STA, WAVE, LANE, FLG, C1 = range(1, 14)
    Q0 = 16
    ONE = 16
    RING = 24
    S0 = 152
    W0 = S0 + 32
    T0 = 216
    O0, L0 = 216, 248
    KT = 252

    a(".p2align 8")
    a(f".type {label},@function")
    a(f"{label}:")
    a("s_load_dwordx16 s[4:19], s[0:1], 0")
    a("s_load_dwordx2 s[20:21], s[0:1], 64")
    if o["ctl"]:
        a("s_memrealtime s[86:87]")
    a("s_cmp_ge_u32 s2, 256")
    a("s_cbranch_scc1 L_end")
    a("v_readfirstlane_b32 s69, v0")
    a(f"v_mov_b32 v{FLG}, {LFLAG:#x}")
    a("v_mov_b32 v24, 0")
    a("v_mov_b32 v25, 0")
    a("s_cmp_ge_u32 s69, 256")
    a("s_cbranch_scc0 L_worker")
    a(f"ds_write_b64 v{FLG}, v[24:25]")
    a(f"ds_write_b64 v{FLG}, v[24:25] offset:8")
    if o["ctl"]:
        a(f"ds_write_b64 v{FLG}, v[24:25] offset:16")
    a("s_waitcnt lgkmcnt(0)")
    a("s_barrier")
    a("s_branch L_helper")
    a("L_worker:")
    st(a, o, 0)
    ids(a, o)
    a(f"v_lshrrev_b32 v{WAVE}, 6, v0")
    a(f"v_and_b32 v{LANE}, 63, v0")
    if o["alt"] == 2:
        a(f"v_lshrrev_b32 v{X0}, 7, v0")
        a(f"v_bfe_u32 v{X1}, v0, 6, 1")
        a(f"v_lshlrev_b32 v{X1}, 12, v{X1}")
        a(f"v_lshl_add_u32 v14, v{X0}, 14, v{X1}")
    else:
        a(f"v_lshlrev_b32 v14, 13, v{WAVE}")
    a(f"v_lshl_add_u32 v{VV}, v{LANE}, 4, v14")
    a(f"v_bfe_u32 v{X0}, v0, 4, 2")
    a(f"v_and_b32 v{X1}, 3, v0")
    a(f"v_lshlrev_b32 v{M}, 4, v{X1}")
    a(f"v_lshl_add_u32 v{M}, v{X0}, 6, v{M}")
    a(f"v_bfe_u32 v{X1}, v0, 2, 2")
    a(f"v_lshl_add_u32 v{VK}, v{X1}, 8, v{M}")
    a(f"v_add_u32 v{VK}, v14, v{VK}")
    a(f"v_and_b32 v{X1}, 7, v0")
    a(f"v_lshlrev_b32 v{STA}, 4, v{X1}")
    a(f"v_lshlrev_b32 v{X1}, 8, v{X1}")
    a(f"v_lshl_add_u32 v{X1}, v{X0}, 6, v{X1}")
    a(f"v_bfe_u32 v{X0}, v0, 3, 1")
    a(f"v_lshl_add_u32 v{X1}, v{X0}, 4, v{X1}")
    a(f"v_lshrrev_b32 v{X0}, 3, v0")
    a(f"v_lshl_add_u32 v{STA}, v{X0}, 12, v{STA}")
    if o["alt"] == 1:
        a(f"v_xor_b32 v14, 0x2000, v{VK}")
        a(f"v_xor_b32 v15, 0x2000, v{VV}")
    a("s_lshl_b32 s3, s22, 23")
    a("s_lshl_b32 s40, s23, 18")
    a("s_add_u32 s3, s3, s40")
    a("s_lshl_b32 s41, s22, 11")
    a("s_mov_b32 s26, 0x40000")
    a("s_mov_b32 s27, 0x20000")
    a("s_mov_b32 s34, 0x4000")
    a("s_mov_b32 s35, 0x20000")
    a(f"s_movk_i32 s91, {0x2000 if o['alt'] == 2 else 0x1000:#x}")
    a("s_waitcnt lgkmcnt(0)")
    st(a, o, 1)
    a("s_add_u32 s24, s6, s3")
    a("s_addc_u32 s25, s7, 0")

    def load(n):
        strm, t, i = n >> 6, (n >> 3) & 7, n & 7
        buf = RING + 4 * (n % RN)
        voff, sb = (VK, 24) if strm == 0 else (VV, 28)
        hi = 8192 if o["alt"] == 2 else 4096
        if o["alt"] == 1 and (t & 1):
            voff = 14 + strm
        if t == 0:
            so = "0" if i < 4 else "s91"
        else:
            if i % 4 == 0:
                a(f"s_mov_b32 s90, {t*32768 + (i>>2)*hi:#x}")
            so = "s90"
        a(f"buffer_load_dwordx4 {vr(buf,4)}, v{voff}, s[{sb}:{sb+3}], {so} offen offset:{(i&3)*1024} {nt}")

    load(0)
    a("s_mov_b32 s32, s4")
    a("s_mov_b32 s33, s5")
    a(f"buffer_load_dwordx4 {vr(Q0,4)}, v{X1}, s[32:35], s41 offen")
    a(f"buffer_load_dwordx4 {vr(Q0+4,4)}, v{X1}, s[32:35], s41 offen offset:32")
    W0N = o["w0"] or W
    for n in range(1, W0N):
        load(n)
    if not o["probe"]:
        st(a, o, 2)
    a("s_mov_b32 s36, s20")
    a("s_mov_b32 s37, s21")
    a(f"s_mov_b32 s38, {WS_BYTES:#x}")
    a("s_mov_b32 s39, 0x20000")
    a("s_lshl_b32 s92, s22, 17")
    a("s_lshl_b32 s95, s23, 7")
    a("s_add_u32 s92, s92, s95")
    for r in range(4):
        a(f"v_mov_b32 v{L0+r}, -1")
    a(f"buffer_store_dwordx4 {vr(L0,4)}, v{STA}, s[36:39], s92 offen")
    a("s_cmp_eq_u32 s69, 64")
    a("s_cbranch_scc0 L_side_done")
    srd(a, 48, 10, 2048)
    a("s_lshl_b32 s61, s22, 8")
    a(f"buffer_load_dwordx4 {vr(KT,4)}, v{M}, s[48:51], s61 offen")
    a("L_side_done:")
    a("s_add_u32 s28, s8, s3")
    a("s_addc_u32 s29, s9, 0")
    a("s_mov_b32 s30, 0x40000")
    a("s_mov_b32 s31, 0x20000")
    a("s_mov_b32 s101, 0xfffffffe")
    a(f"s_mov_b32 s68, {C_SC:#x}")
    a("s_mov_b32 s42, 0x05040100")
    a("s_mov_b32 s43, 0x07060302")
    if o["we"]:
        a("s_getreg_b32 s57, hwreg(HW_REG_XCC_ID, 0, 3)")
        a(f"s_lshr_b32 s57, {o['fastmask']:#x}, s57")
        a("s_and_b32 vcc_lo, s57, 1")
        a("s_mov_b32 vcc_hi, 0")
    a(f"v_mov_b32 v{C1}, 1")
    a(f"v_and_b32 v{MWR}, 15, v0")
    a(f"v_lshlrev_b32 v{MWR}, 4, v{MWR}")
    a(f"v_lshl_add_u32 v{MWR}, v{WAVE}, 2, v{MWR}")
    a(f"v_lshrrev_b32 v{FROW}, 5, v0")
    a(f"v_lshlrev_b32 v{FROW}, 4, v{FROW}")
    a(f"v_and_b32 v{OADR}, 7, v0")
    a(f"v_mul_u32_u24 v{OADR}, 528, v{OADR}")
    a(f"v_lshl_add_u32 v{OADR}, v{WAVE}, 12, v{OADR}")
    a(f"v_bfe_u32 v{X0}, v0, 4, 2")
    a(f"v_lshl_add_u32 v{OADR}, v{X0}, 7, v{OADR}")
    a(f"v_and_b32 v{X0}, 8, v0")
    a(f"v_lshlrev_b32 v{X0}, 3, v{X0}")
    a(f"v_xor_b32 v{OADR}, v{X0}, v{OADR}")

    a("s_barrier")
    items = []
    def item(lines, need=-1, cost=None, frees=None):
        if isinstance(lines, str):
            lines = [lines]
        if cost is None:
            cost = sum(10 if l.startswith("v_mfma") else 8 if l.startswith("v_exp") else 4 for l in lines)
        items.append((lines, cost, need, frees))
    def sub(fn, *args, **kw):
        b = Asm()
        fn(b, *args, **kw)
        return [l.strip() for l in b.lines]
    def flagl(off):
        return ["s_mov_b64 exec, 1", f"ds_add_u32 v{FLG}, v{C1} offset:{off}", "s_mov_b64 exec, -1"]
    def KB(j):
        return RING + 4 * (j % RN)
    for j in range(64 + 5):
        need = max(min(j, 63), 1)
        if j < 64:
            i = j % 8
            item(f"v_mfma_f32_16x16x32_bf16 {vr(T0+4*i+2,4)}, {vr(KB(j),4)}, {vr(Q0,4)}, 0", need)
        if 0 <= j - 2 < 64:
            i = (j - 2) % 8
            item(f"v_mfma_f32_16x16x32_bf16 {vr(T0+4*i,4)}, {vr(KB(j-2),4)}, {vr(Q0+4,4)}, {vr(T0+4*i,4)}", need, frees=j - 2)
        jj = j - 5
        if 0 <= jj < 64:
            i = jj % 8
            item(f"v_add_f32_dpp v{S0+jj}, v{T0+4*i+3}, v{T0+4*i+2} row_ror:8 row_mask:0xf bank_mask:0xf", need)
            if jj == 1:
                item(f"v_max_f32 v{M}, v{S0}, v{S0+1}", need)
            elif jj % 2 == 1:
                item(f"v_max3_f32 v{M}, v{S0+jj-1}, v{S0+jj}, v{M}", need)
        if j == W0N + 2:
            item(["s_cmp_eq_u32 s69, 64", "s_cbranch_scc0 L_notree", ";SKIP_BEGIN",
                  f"v_mfma_f32_16x16x32_bf16 {vr(W0+2,4)}, {vr(KT,4)}, {vr(Q0,4)}, 0",
                  f"v_mfma_f32_16x16x32_bf16 {vr(W0,4)}, {vr(KT,4)}, {vr(Q0+4,4)}, {vr(W0,4)}",
                  f"v_and_b32 v{X0}, 15, v0", f"v_lshlrev_b32 v{X0}, 2, v{X0}",
                  f"v_add_f32_dpp v{X1}, v{W0+3}, v{W0+2} row_ror:8 row_mask:0xf bank_mask:0xf",
                  f"ds_write_b32 v{X0}, v{X1} offset:{LT}", ";SKIP_END", "L_notree:"], need, cost=10)
    if o["stamp"] or o["amp"]:
        item(sub(st, o, 3), 63)
    xl = [l for l in sub(xlane_sum_all, [M], X0, [16, 32], op="v_max_f32") if not l.startswith("s_nop")]
    item(xl, 63)
    item([f"v_mov_b32 v{ONE+r}, 0x3f803f80" for r in range(4)] + [f"v_mul_f32 v{M}, s68, v{M}",
          f"ds_write_b32 v{MWR}, v{M} offset:{LM}"], 63)
    for t in range(8):
        for i in range(8):
            item(f"v_fma_f32 v{S0+8*t+i}, v{S0+8*t+i}, s68, -v{M}", 63)
        for i in range(8):
            item(f"v_exp_f32 v{S0+8*t+i}, v{S0+8*t+i}", 63)
        if t > 0:
            for k in range(4 * t - 4, 4 * t):
                item(f"v_cvt_pk_bf16_f32 v{S0+k}, v{S0+2*k}, v{S0+2*k+1}", 63)
        if t > 1:
            c = "0" if t == 2 else vr(L0, 4)
            item(f"v_mfma_f32_16x16x32_bf16 {vr(L0,4)}, {vr(ONE,4)}, {vr(S0+4*(t-2),4)}, {c}", 63)
    for k in range(28, 32):
        item(f"v_cvt_pk_bf16_f32 v{S0+k}, v{S0+2*k}, v{S0+2*k+1}", 63)
    item(f"v_mfma_f32_16x16x32_bf16 {vr(L0,4)}, {vr(ONE,4)}, {vr(S0+24,4)}, {vr(L0,4)}", 63)
    item(f"v_mfma_f32_16x16x32_bf16 {vr(L0,4)}, {vr(ONE,4)}, {vr(S0+28,4)}, {vr(L0,4)}", 63)
    item([f"v_lshlrev_b32 v{X1}, 4, v0", f"ds_write_b32 v{MWR}, v{L0} offset:{LL}"] + flagl(F_ML), 63, cost=60)
    if o["stamp"] or o["amp"]:
        item(sub(st, o, 4), 63)
    for t in range(8):
        if t == o["pollat"] or t == 7:
            item(flagl(F_PROG), 63 + 8 * t)
        def mf(j):
            c = "0" if t == 0 else vr(O0 + 4 * j, 4)
            return f"v_mfma_f32_16x16x32_bf16 {vr(O0+4*j,4)}, {vr(W0+4*j,4)}, {vr(S0+4*t,4)}, {c}"
        for m in range(4):
            n0 = 64 + 8 * t + 2 * m
            pm = {}
            for u in range(4):
                for half in range(2):
                    j = 2 * u + half
                    pm[j] = f"v_perm_b32 v{W0+4*j+m}, v{KB(n0+1)+u}, v{KB(n0)+u}, s{42+half}"
            if t == 7 and m == 3:
                order = [0, 4, 1, 5, 2, 6, 3, 7]
                ls = [pm[order[0]], pm[order[1]], pm[order[2]]]
                for x in range(8):
                    ls.append(mf(order[x]))
                    if x + 3 < 8:
                        ls.append(pm[order[x + 3]])
                item(ls, n0 + 1, frees=n0 + 1)
            else:
                item([pm[j] for j in range(8)], n0 + 1, frees=n0 + 1)
        if t < 7:
            for j in range(8):
                item(mf(j), 64 + 8 * t + 7, cost=16)
        if t == 5:
            item([f"v_xor_b32 v{S0+j}, {j<<4}, v{OADR}" for j in range(1, 4)], 64 + 8 * t + 7)
    def dith(n):
        k = (n - o["cp0"]) // o["cpstep"]
        seq = {1: [0], 2: [-1, 1], 3: [-1, 1, 0], 4: [-1, 1 / 3, 1, -1 / 3]}[o["dn"]]
        return o["dith"] * seq[k % len(seq)]
    start = len(a.lines)
    q = 0
    freed = -1
    avail = -1
    for n in range(W0N, 128):
        assert n - RN <= freed, (n, freed)
        we = o["we"]
        if we and n < 128 - o["sprint"] and (o["wfrac"] == 0 or n % o["wfrac"] != 0):
            a(f"s_cbranch_vccnz L_th{n}")
            a(f"s_waitcnt vmcnt({we-1})")
            a(f"L_th{n}:")
        wn = W
        if o["ctl"] and o["cp0"] <= n < 128 - o["sprint"]:
            if (n - o["cp0"]) % o["cpstep"] == 0:
                a("s_waitcnt lgkmcnt(0)")
                a(f"v_readfirstlane_b32 s60, v{KT}")
                a("s_nop 1")
                a("s_sub_u32 s61, s62, s60")
                a("s_cmp_lg_u32 s60, 0")
                a("s_cselect_b32 s61, s61, 0")
                a(f"s_cmp_gt_u32 s61, {int(round(o['c0'] + n * o['slope'] / 10.0 + dith(n)))}")
                a("s_cselect_b64 vcc, -1, 0")
            a(f"s_cbranch_vccnz L_th{n}")
            a(";SKIP_BEGIN")
            a(f"s_waitcnt vmcnt({int(str(o['wpat'])[0])-1})")
            a(";SKIP_END")
            a(f"L_th{n}:")
            wn = o["wb"]
        elif o["wpat"] != "" and n < 128 - o["sprint"]:
            pat = str(o["wpat"])
            wn = int(pat[n % len(pat)])
            if o["ramp"] != "" and n - W0N < len(str(o["ramp"])):
                wn = int(str(o["ramp"])[n - W0N])
        a(f"s_waitcnt vmcnt({wn-1})")
        if n == o["probe"]:
            st(a, o, 2)
        load(n)
        if o["ctl"] and o["cp0"] <= n + 1 < 128 - o["sprint"] and (n + 1 - o["cp0"]) % o["cpstep"] == 0:
            a("s_memrealtime s[62:63]")
            a(f"ds_read_b32 v{KT}, v{FLG} offset:{F_T0}")
        avail = max(avail, n - wn)
        budget = o["budget"]
        while q < len(items) and items[q][2] <= avail and budget > 0:
            for l in items[q][0]:
                a(l)
            budget -= items[q][1]
            if items[q][3] is not None:
                freed = items[q][3]
            q += 1
    while q < len(items):
        if items[q][2] > avail:
            avail = items[q][2]
            a(f"s_waitcnt vmcnt({127-avail})")
        for l in items[q][0]:
            a(l)
        q += 1
    st(a, o, 5)
    for j in range(4):
        for r in range(4):
            a(f"v_mov_b32_dpp v{O0+4*j+r}, v{O0+4*(j+4)+r} row_shr:8 row_mask:0xf bank_mask:0xc")
        a(f"ds_write_b128 v{OADR if j == 0 else S0+j}, {vr(O0+4*j,4)}")
    a.lines[start:] = hz.fix(a.lines[start:])
    a("s_waitcnt lgkmcnt(0)")
    a("s_barrier")
    OR, FR = RING, RING + 16
    a(f"ds_read_b128 {vr(FR,4)}, v{FROW} offset:{LF}")
    for w in range(4):
        a(f"ds_read_b128 {vr(OR+4*w,4)}, v{X1} offset:{4096*w}")
    a(f"ds_read_b32 v{X0}, v{FLG} offset:{F_MODE}")
    fine = not (o["stamp"] or o["amp"])
    for w in range(4):
        a(f"s_waitcnt lgkmcnt({4-w})" if fine else "s_waitcnt lgkmcnt(0)")
        if o["pk"]:
            for r in (0, 2):
                a(pkfma(OR + r, OR + 4 * w + r, FR + w, None if w == 0 else OR + r))
        else:
            for r in range(4):
                if w == 0:
                    a(f"v_mul_f32 v{OR+r}, v{FR}, v{OR+r}")
                else:
                    a(f"v_fmac_f32 v{OR+r}, v{FR+w}, v{OR+4*w+r}")
    for r in range(4):
        a(f"v_min_u32 v{OR+r}, s101, v{OR+r}")
    a(f"buffer_store_dwordx4 {vr(OR,4)}, v{STA}, s[36:39], s92 offen")
    st(a, o, 6)
    a("s_waitcnt lgkmcnt(0)")
    a(f"v_readfirstlane_b32 s94, v{X0}")
    a(f"s_add_u32 s92, s92, {PB_OFF:#x}")
    a("s_nop 1")
    a("s_cmp_eq_u32 s94, 1")
    a("s_cbranch_scc1 L_fin")
    a(f"buffer_store_dwordx4 {vr(OR,4)}, v{STA}, s[36:39], s92 offen sc1")
    a("s_waitcnt vmcnt(0)")
    for l in flagl(F_PB):
        a(l)
    a("s_branch L_fin")

    a("L_helper:")
    if o["x"] == 1:
        a("v_mov_b32 v24, 1")
        a(f"ds_write_b32 v{FLG}, v24 offset:{F_MODE}")
        a("s_waitcnt lgkmcnt(0)")
        a("s_endpgm")
    B = RING
    mk, stv, vt, om, Z0, OA, ox, Mx, L, FV, ROW, FA = (B + i for i in range(2, 14))
    X, ML, F, O, T, Z, OB, MLA, VTA, BP, X2 = B + 16, B + 32, B + 36, B + 44, B + 48, B + 56, B + 60, B + 64, B + 65, B + 66, B + 72
    st(a, o, 0)
    ids(a, o)
    a(f"v_lshrrev_b32 v{WAVE}, 6, v0")
    a(f"v_and_b32 v{LANE}, 63, v0")
    a("s_lshr_b32 s40, s23, 2")
    a("s_and_b32 s41, s23, 3")
    a("s_lshl_b32 s100, s22, 5")
    a("s_lshl_b32 s65, s22, 12")
    a(f"s_add_u32 s65, s65, {ML_OFF:#x}")
    a("s_lshl_b32 s95, s23, 7")
    a("s_add_u32 s93, s65, s95")
    a("s_lshl_b32 s95, s40, 4")
    a("s_add_u32 s65, s65, s95")
    a("s_lshl_b32 s60, s22, 3")
    a("s_add_u32 s60, s60, s40")
    a("s_lshl_b32 s60, s60, 8")
    a("s_lshl_b32 s61, s22, 8")
    a("s_lshl_b32 s67, s41, 6")
    a("s_add_u32 s63, s61, s67")
    a("s_add_u32 s66, s60, s67")
    a("s_lshl_b32 s64, s22, 17")
    a("s_lshl_b32 s67, s23, 12")
    a("s_add_u32 s64, s64, s67")
    a("s_lshr_b32 s62, s22, 2")
    a("s_lshl_b32 s62, s62, 4")
    for d, n in ((36, WS_BYTES), (44, 0x4000), (96, 256)):
        a(f"s_mov_b32 s{d+2}, {n:#x}")
        a(f"s_mov_b32 s{d+3}, 0x20000")
    a(f"v_mov_b32 v{Z0}, 0")
    a(f"v_and_b32 v{X0}, 7, v{LANE}")
    a(f"v_lshlrev_b32 v{MLA}, 4, v{X0}")
    a(f"v_xor_b32 v{OA}, s40, v{X0}")
    a(f"v_lshlrev_b32 v{OA}, 1, v{OA}")
    a(f"v_bfe_u32 v{X1}, v{LANE}, 3, 2")
    a(f"v_lshl_add_u32 v{VTA}, v{X1}, 4, v{OA}")
    a(f"v_bfe_u32 v{X1}, v{LANE}, 4, 1")
    a(f"v_lshl_add_u32 v{OA}, v{X1}, 5, v{OA}")
    a(f"v_bfe_u32 v{X1}, v{LANE}, 5, 1")
    a(f"v_lshl_add_u32 v{OA}, v{X1}, 4, v{OA}")
    a(f"v_lshrrev_b32 v{X1}, 3, v{LANE}")
    a(f"v_lshlrev_b32 v{ox}, 9, v{X1}")
    a(f"v_lshl_add_u32 v{ox}, v{X0}, 4, v{ox}")
    a(f"v_lshlrev_b32 v{BP}, 4, v{X1}")
    a(f"v_and_b32 v{om}, 31, v{LANE}")
    a(f"v_lshlrev_b32 v{om}, 7, v{om}")
    a(f"v_and_b32 v{ROW}, 15, v{LANE}")
    a(f"v_lshlrev_b32 v{ROW}, 4, v{ROW}")
    a(f"s_mov_b32 s58, {o['maxspin']}")
    a("s_getreg_b32 s57, hwreg(HW_REG_XCC_ID, 0, 4)")
    if o["fakexcc"]:
        a("s_lshr_b32 s57, s2, 3")
        a("s_and_b32 s57, s57, 1")
    a("s_waitcnt lgkmcnt(0)")
    st(a, o, 1)
    a("s_load_dword s56, s[14:15], 0")
    a("s_add_u32 s12, s12, s63")
    a("s_addc_u32 s13, s13, 0")
    a("s_load_dwordx8 s[24:31], s[12:13], 0")
    a("s_load_dwordx8 s[48:55], s[12:13], 32")
    a("s_mov_b32 s36, s20")
    a("s_mov_b32 s37, s21")
    a("s_mov_b32 s44, s16")
    a("s_mov_b32 s45, s17")
    a("s_mov_b32 s96, s18")
    a("s_mov_b32 s97, s19")
    a("s_cmp_eq_u32 s23, 0")
    a("s_cbranch_scc0 L_nolead")
    for r in range(4):
        a(f"v_mov_b32 v{Z+r}, -1")
    a(f"v_lshlrev_b32 v{FA}, 4, v{LANE}")
    if o["ctl"]:
        a("s_or_b32 s94, s86, 1")
        a(f"v_mov_b32 v{FV}, s94")
    else:
        a(f"v_mov_b32 v{FV}, 1")
    a("s_setprio 3")
    for k in range(4):
        a(f"buffer_store_dwordx4 {vr(Z,4)}, v{FA}, s[36:39], s93 offen offset:{1024*k} sc1")
    a("s_waitcnt vmcnt(0)")
    a("s_mov_b64 exec, 1")
    a(f"buffer_store_dword v{FV}, v{Z0}, s[96:99], s100 offen sc1")
    a("s_mov_b64 exec, -1")
    a("s_setprio 0")
    a("L_nolead:")
    a("s_waitcnt lgkmcnt(0)")
    for i in range(16):
        a(f"v_writelane_b32 v{X0}, s{24+i if i < 8 else 40+i}, {i}")
    a(f"v_and_b32 v{X1}, 0x3c, v{VTA}")
    a(f"ds_bpermute_b32 v{vt}, v{X1}, v{X0}")
    a(f"v_and_b32 v{X1}, 2, v{VTA}")
    a(f"v_lshlrev_b32 v{X1}, 3, v{X1}")
    a("s_lshr_b32 s56, s56, s62")
    a("s_lshl_b32 s56, s56, 16")
    a(f"v_sub_f32 v{mk}, 1.0, s56")
    a(f"v_mul_f32 v{mk}, {C_MASK:#x}, v{mk}")
    a("s_lshl_b32 s94, s40, 2")
    a("s_waitcnt lgkmcnt(0)")
    a(f"v_lshrrev_b32 v{vt}, v{X1}, v{vt}")
    a(f"v_lshlrev_b32 v{vt}, 16, v{vt}")
    a(f"v_mov_b32 v{VTA}, s94")
    a("s_mov_b32 s101, 0xfffffffe")

    def ldsspin(off, val, lab, out):
        a(f"{lab}:")
        a("s_sub_u32 s58, s58, 1")
        a(f"s_cbranch_scc1 {out}")
        a(f"s_sleep {o['ldssleep']}")
        a(f"ds_read_b32 v{X0}, v{FLG} offset:{off}")
        a("s_waitcnt lgkmcnt(0)")
        a(f"v_readfirstlane_b32 s94, v{X0}")
        a("s_nop 2")
        a(f"s_cmp_ge_u32 s94, {val}")
        a(f"s_cbranch_scc0 {lab}")

    def dbgword(off):
        a(f"buffer_load_dword v{FV}, v{Z0}, s[96:99], s100 offen offset:{off} sc1")
        a("s_waitcnt vmcnt(0)")
        a(f"v_readfirstlane_b32 s94, v{FV}")
        a("s_nop 2")

    if o["x"] == 4:
        ldsspin(F_PROG, 8, "L_spx", "L_giveup")
        a("v_mov_b32 v24, 1")
        a(f"ds_write_b32 v{FLG}, v24 offset:{F_MODE}")
        a("s_waitcnt lgkmcnt(0)")
        a("s_endpgm")
    if o["ctl"]:
        a(f"v_and_b32 v{FA}, 7, v{LANE}")
        a(f"v_lshlrev_b32 v{FA}, 5, v{FA}")
        a(f"s_sleep {o['leadsleep']}")
        a("L_lead:")
        a("s_sub_u32 s58, s58, 1")
        a("s_cbranch_scc1 L_giveup")
        a(f"s_sleep {o['leadsleep2']}")
        a("s_setprio 3")
        a(f"buffer_load_dword v{FV}, v{FA}, s[96:99], 0 offen sc1")
        a("s_waitcnt vmcnt(0)")
        a("s_setprio 0")
        a(f"v_cmp_eq_u32 vcc, 0, v{FV}")
        a("s_cbranch_vccnz L_lead")
        a(f"v_subrev_u32 v{FV}, s86, v{FV}")
        a("s_nop 1")
        if o["t0mean"]:
            xlane_sum_all(a, [FV], T, [1, 2, 4], op="v_add_u32")
            a(f"v_ashrrev_i32 v{FV}, 3, v{FV}")
        else:
            xlane_sum_all(a, [FV], T, [1, 2, 4], op="v_min_i32")
        a(f"v_add_u32 v{FV}, s86, v{FV}")
        a(f"v_or_b32 v{FV}, 1, v{FV}")
        a(f"ds_write_b32 v{FLG}, v{FV} offset:{F_T0}")
    else:
        a("L_lead:")
        a("s_sub_u32 s58, s58, 1")
        a("s_cbranch_scc1 L_giveup")
        a(f"s_sleep {o['leadsleep']}")
        a("s_setprio 3")
        dbgword(0)
        a("s_setprio 0")
        a("s_cmp_eq_u32 s94, 0")
        a("s_cbranch_scc1 L_lead")
    st(a, o, 2)
    ldsspin(F_ML, 4, "L_sp1", "L_giveup")
    a(f"ds_read_b128 {vr(T,4)}, v{ROW} offset:{LM}")
    a(f"ds_read_b128 {vr(T+4,4)}, v{ROW} offset:{LL}")
    a(f"ds_read_b32 v{stv}, v{VTA} offset:{LT}")
    a("s_waitcnt lgkmcnt(0)")
    a(f"v_max3_f32 v{Z}, v{T}, v{T+1}, v{T+2}")
    a(f"v_max_f32 v{Z}, v{T+3}, v{Z}")
    for w in range(4):
        a(f"v_sub_f32 v{T+w}, v{T+w}, v{Z}")
    for w in range(4):
        a(f"v_exp_f32 v{T+w}, v{T+w}")
    a(f"v_mov_b32 v{Z+2}, s57")
    a(f"v_mov_b32 v{Z+3}, 0")
    a(f"ds_write_b128 v{ROW}, {vr(T,4)} offset:{LF}")
    a(f"v_mul_f32 v{Z+1}, v{T}, v{T+4}")
    for w in range(1, 4):
        a(f"v_fmac_f32 v{Z+1}, v{T+w}, v{T+4+w}")
    a(f"v_min_u32 v{Z}, s101, v{Z}")
    a(f"v_min_u32 v{Z+1}, s101, v{Z+1}")
    a("s_setprio 3")
    a("s_mov_b64 exec, 0xff")
    a(f"buffer_store_dwordx4 {vr(Z,4)}, v{MLA}, s[36:39], s93 offen sc1")
    a("s_mov_b64 exec, -1")
    a("s_setprio 0")
    a(f"v_mul_f32 v{stv}, {C_SC:#x}, v{stv}")
    a(f"v_add_f32 v{stv}, v{stv}, v{mk}")
    if o["x"] == 2:
        a("v_mov_b32 v24, 1")
        a(f"ds_write_b32 v{FLG}, v24 offset:{F_MODE}")
        a("s_waitcnt lgkmcnt(0)")
        a("s_endpgm")
    st(a, o, 3)
    ldsspin(F_PROG, 1, "L_sp2", "L_giveup")
    st(a, o, 4)
    a("s_setprio 3")
    a("s_mov_b32 s88, 0")
    a("L_mlpoll:")
    a("s_sub_u32 s58, s58, 1")
    a("s_cbranch_scc1 L_giveup2")
    a(f"buffer_load_dwordx4 {vr(ML,4)}, v{om}, s[36:39], s65 offen sc1")
    a("s_waitcnt vmcnt(0)")
    a(f"v_max3_u32 v{X0}, v{ML}, v{ML+1}, v{ML+2}")
    a(f"v_cmp_eq_u32 vcc, -1, v{X0}")
    a("s_cbranch_vccz L_mlgot")
    a("s_cmp_eq_u32 s88, 0")
    a("s_cbranch_scc0 L_mlpoll")
    a(f"s_sleep {o['mlsleep']}")
    a(f"ds_read_b32 v{X0}, v{FLG} offset:{F_PROG}")
    a("s_waitcnt lgkmcnt(0)")
    a(f"v_readfirstlane_b32 s95, v{X0}")
    a("s_nop 2")
    a("s_cmp_le_u32 s95, 4")
    a("s_cbranch_scc1 L_mlpoll")
    a("s_barrier")
    a("s_mov_b32 s88, 1")
    a("s_branch L_mlpoll")
    a("L_mlgot:")
    a(f"v_cmp_ne_u32 vcc, s57, v{ML+2}")
    a(f"v_max_f32 v{Mx}, v{ML}, v{stv}")
    a("s_nop 0")
    a("s_cmp_eq_u64 vcc, 0")
    a("s_cselect_b32 s56, 1, 0")
    a(f"v_mov_b32 v{X1}, s56")
    a(f"ds_write_b32 v{FLG}, v{X1} offset:{F_MODE}")
    xlane_sum_all(a, [Mx], T, [1, 2, 4, 8, 16], op="v_max_f32")
    a(f"v_sub_f32 v{F+5}, v{ML}, v{Mx}")
    a(f"v_sub_f32 v{F+4}, v{stv}, v{Mx}")
    a(f"v_exp_f32 v{F+5}, v{F+5}")
    a(f"v_exp_f32 v{F+4}, v{F+4}")
    a("s_nop 0")
    a(f"v_mul_f32 v{L}, v{F+5}, v{ML+1}")
    a("s_nop 1")
    xlane_sum_all(a, [L], T, [1, 2, 4, 8, 16])
    a(f"v_add_f32 v{L}, v{L}, v{F+4}")
    a(f"v_rcp_f32 v{L}, v{L}")
    a("s_nop 0")
    a(f"v_mul_f32 v{F+5}, v{F+5}, v{L}")
    a(f"v_mul_f32 v{F+4}, v{F+4}, v{L}")
    for k in range(4):
        a(f"ds_bpermute_b32 v{F+k}, v{BP}, v{F+5} offset:{4*k}")
    a(f"v_mul_f32 v{X0}, v{F+4}, v{vt}")
    for r in range(4):
        a(f"v_mov_b32 v{OB+r}, 0")
    for r in range(4):
        a(f"s_mov_b64 exec, {0xff << (8*r):#x}") if r < 3 else a("s_mov_b32 exec_lo, 0xff000000")
        a(f"v_mov_b32 v{OB+r}, v{X0}")
    a("s_mov_b64 exec, -1")
    a("s_waitcnt lgkmcnt(0)")
    if o["x"] == 3:
        a("s_endpgm")
    st(a, o, 5)
    a("s_cmp_eq_u32 s56, 1")
    a("s_cbranch_scc1 L_poll")
    a("s_cmp_eq_u32 s88, 0")
    a("s_cbranch_scc0 L_postbar")
    a("s_barrier")
    a("s_mov_b32 s88, 1")
    a("L_postbar:")
    ldsspin(F_PB, 4, "L_sp4", "L_fin")
    a(f"v_mov_b32 v{X0}, 1")
    a("s_mov_b64 exec, 1")
    a(f"buffer_atomic_add v{X0}, v{Z0}, s[96:99], s100 offen offset:4 sc1")
    a("s_mov_b64 exec, -1")
    a("L_c2:")
    a("s_sub_u32 s58, s58, 1")
    a("s_cbranch_scc1 L_fin")
    dbgword(4)
    a("s_cmp_ge_u32 s94, 32")
    a("s_cbranch_scc0 L_c2")
    a(f"s_add_u32 s64, s64, {PB_OFF:#x}")

    def finalmath(b, Xb):
        if o["pk"]:
            for k in range(4):
                for r in (0, 2):
                    b(pkfma(O + r, Xb + 4 * k + r, F + k, (OB if k == 0 else O) + r))
        else:
            for r in range(4):
                b(f"v_fma_f32 v{O+r}, v{F}, v{Xb+r}, v{OB+r}")
            for k in range(1, 4):
                for r in range(4):
                    b(f"v_fmac_f32 v{O+r}, v{F+k}, v{Xb+4*k+r}")
        b(f"v_permlane32_swap_b32 v{O}, v{O+1}")
        b(f"v_permlane32_swap_b32 v{O+2}, v{O+3}")
        b(f"v_add_f32 v{O}, v{O}, v{O+1}")
        b(f"v_add_f32 v{O+2}, v{O+2}, v{O+3}")
        b(f"v_permlane16_swap_b32 v{O}, v{O+2}")
        b(f"v_add_f32 v{O}, v{O}, v{O+2}")
        b(f"v_add_f32_dpp v{O}, v{O}, v{O} row_ror:8 row_mask:0xf bank_mask:0xf")
        b(f"v_cvt_pk_bf16_f32 v{O}, v{O}, v{O}")
    if o["incr"]:
        a("L_poll:")
        for k in range(4):
            a(f"s_mov_b64 s[{24+2*k}:{25+2*k}], -1")
        a("L_poll2:")
        a("s_sub_u32 s58, s58, 1")
        a("s_cbranch_scc1 L_giveup2")
        for k in range(4):
            a(f"s_mov_b64 exec, s[{24+2*k}:{25+2*k}]")
            a(f"s_cbranch_execz L_pk{k}")
            a(f"buffer_load_dwordx4 {vr(X+4*k,4)}, v{ox}, s[36:39], s64 offen offset:{128*k} sc1")
            a(f"L_pk{k}:")
        a("s_mov_b64 exec, -1")
        a("s_waitcnt vmcnt(0)")
        b = Asm()
        for k in range(4):
            b(f"v_max3_u32 v{T+k}, v{X+4*k}, v{X+4*k+1}, v{X+4*k+2}")
        for k in range(4):
            b(f"v_max_u32 v{T+k}, v{T+k}, v{X+4*k+3}")
        for k in range(4):
            b(f"v_cmp_eq_u32 s[{24+2*k}:{25+2*k}], -1, v{T+k}")
        c = Asm()
        finalmath(c, X)
        nh = 2 if o["pk"] else 4
        b.lines += c.lines[:nh]
        b("s_or_b64 s[32:33], s[24:25], s[26:27]")
        b("s_or_b64 s[34:35], s[28:29], s[30:31]")
        b("s_or_b64 s[32:33], s[32:33], s[34:35]")
        b("s_cselect_b32 s94, s88, 0")
        b("s_cmp_eq_u32 s94, 1")
        b("s_cbranch_scc1 L_poll3" if o["boff"] else "s_cbranch_scc1 L_poll2")
        b.lines += c.lines[nh:]
        a.lines += hz.fix(b.lines)
        a("s_cmp_eq_u64 s[32:33], 0")
        a("s_cbranch_scc1 L_done")
        a("s_barrier")
        a("s_mov_b32 s88, 1")
        st(a, o, 6)
        a("s_branch L_poll2")
        if o["boff"]:
            a("L_poll3:")
            a("s_bcnt1_i32_b64 s94, s[32:33]")
            a(f"s_cmp_le_u32 s94, {o['boffn']}")
            a("s_cbranch_scc1 L_poll2")
            a(f"s_sleep {o['boff']}")
            a("s_branch L_poll2")
    else:
        def pollld(Xb):
            for k in range(4):
                a(f"buffer_load_dwordx4 {vr(Xb+4*k,4)}, v{ox}, s[36:39], s64 offen offset:{128*k} sc1")
        def pollmath(Xb):
            b = Asm()
            sent_check(b, Xb, 16, X0, X1)
            finalmath(b, Xb)
            a.lines += hz.fix(b.lines)
        a("L_poll:")
        pollld(X)
        a("L_poll2:")
        a("s_sub_u32 s58, s58, 1")
        a("s_cbranch_scc1 L_giveup2")
        pollld(X2)
        a("s_waitcnt vmcnt(4)")
        pollmath(X)
        a("s_cbranch_vccz L_done")
        pollld(X)
        a("s_waitcnt vmcnt(4)")
        pollmath(X2)
        a("s_cbranch_vccz L_done")
        a("s_cmp_eq_u32 s88, 0")
        a("s_cbranch_scc0 L_poll2")
        a("s_waitcnt vmcnt(0)")
        a("s_barrier")
        a("s_mov_b32 s88, 1")
        st(a, o, 6)
        a("s_branch L_poll")
    a("L_done:")
    a(f"buffer_store_short v{O}, v{OA}, s[44:47], s66 offen {o['outsc']}")
    a("L_giveup2:")
    a("s_cmp_eq_u32 s88, 0")
    a("s_cbranch_scc0 L_fin")
    a("L_giveup:")
    a("s_barrier")
    a("L_fin:")
    if o["stamp"]:
        st(a, o, 7)
        dump_stamps(a, o, 8, WAVE, nwaves=NW)
    if o["amp"]:
        st(a, o, 7)
        a("s_waitcnt lgkmcnt(0)")
        j = o["amp"]
        a(f"s_sub_u32 s60, s{70+2*j}, s70")
        a(f"s_mul_i32 s60, s60, {o['mult']}")
        a(f"s_add_u32 s60, s60, {o['base']}")
        if not o["amph"]:
            a("s_cmp_ge_u32 s69, 256")
            a("s_cbranch_scc1 L_end")
        a("L_spin:")
        a("s_sleep 2")
        a("s_memrealtime s[88:89]")
        a("s_waitcnt lgkmcnt(0)")
        a("s_sub_u32 s88, s88, s70")
        a("s_cmp_lt_u32 s88, s60")
        a("s_cbranch_scc1 L_spin")
    a("L_end:")
    a("s_endpgm")


def gen9(o):
    a = Asm()
    main = NAME + "_kernel"
    a.lines.append((HEADER + f"; @launch grid=(256,1,1) block=(320,1,1) lds=17408" + DOC).rstrip())
    a('.amdgcn_target "amdgcn-amd-amdhsa--gfx950"')
    a(".text")
    a(f".globl {main}")
    kernel(a, o, main)
    a('.section .rodata,"a"')
    a(".p2align 6")
    kd(a, main, 256)
    return a.text()


DEF = dict(nt="nt", map=1, stamp=0, amp=0, amph=0, mult=0, base=6000, maxspin=200000, mlsleep=16, ldssleep=4,
           pollat=3, fakexcc=0, w=8, budget=160, outsc="", we=0, wfrac=0, sprint=8, fastmask=0xaa, leadsleep=40, wpat='5', x=0, incr=0, alt=1, boff=0, boffn=24, probe=0, w0=0, ramp='7777777766666666', ctl=1, cp0=24, cpstep=4, c0=25, slope=137, wb=8, leadsleep2=16, dith=0, dn=2, t0mean=1, pk=1)
if __name__ == "__main__":
    o = dict(DEF)
    for kv in sys.argv[2:]:
        k, v = kv.split("=")
        assert k in o, k
        o[k] = int(v, 0) if v.lstrip("-").replace("0x", "").isalnum() and v.lstrip("-")[0].isdigit() else v.replace("+", " ")
    open(sys.argv[1], "w").write(gen9(o))
```

```python
import sys
from gen import Asm, vr, srd, HEADER, NAME, C_SC, C_MASK, xlane_sum_all, dump_stamps, kd, ids
from gen4 import sent_check
import hz

NW = 5
DOC = "\n;     In-flight depth is 5 loads per wave, 8 when the wave is behind a common schedule (origin: mean start time of the\n;  hand-offs      : (max,sum) table: cleared to all-ones by the group leader, announced in d_debug, write-through stores,\n;     every word validates itself. Partial rows: if the table shows the whole group on one XCD they go through that L2\n"
PO_BYTES = 8 * 131072
PB_OFF = PO_BYTES
ML_OFF = 2 * PO_BYTES
WS_BYTES = ML_OFF + 8 * 4096
LM, LL, LF, LT, LFLAG = 0x4000, 0x4100, 0x4200, 0x4300, 0x4380
F_ML, F_PROG, F_MODE, F_PB, F_T0 = 0, 4, 8, 12, 16


def st(a, o, idx, force=False):
    if o.get("probes") and not force and idx in (1, 2, 3, 4, 6) and not o.get("_helper"):
        return
    if o["stamp"] or o["amp"]:
        a(f"s_memrealtime s[{70+2*idx}:{71+2*idx}]")


def pkfma(d, x, f, c):
    fp, hi = f & ~1, f & 1
    if c is None:
        return f"v_pk_mul_f32 {vr(d,2)}, {vr(x,2)}, {vr(fp,2)} op_sel:[0,{hi}] op_sel_hi:[1,{hi}]"
    return f"v_pk_fma_f32 {vr(d,2)}, {vr(x,2)}, {vr(fp,2)}, {vr(c,2)} op_sel:[0,{hi},0] op_sel_hi:[1,{hi},1]"


def kernel(a, o, label):
    nt = o["nt"]
    W = o["w"]
    RN = 32
    VK, VV, OADR, M, X0, X1, FROW, MWR, STA, WAVE, LANE, FLG, C1 = range(1, 14)
    Q0 = 16
    ONE = 16
    RING = 24
    S0 = 152
    W0 = S0 + 32
    T0 = 216
    O0, L0 = 216, 248
    KT = 252

    a(".p2align 8")
    a(f".type {label},@function")
    a(f"{label}:")
    a("s_load_dwordx16 s[4:19], s[0:1], 0")
    a("s_load_dwordx2 s[20:21], s[0:1], 64")
    if o["ctl"]:
        a("s_memrealtime s[86:87]")
    a("s_cmp_ge_u32 s2, 256")
    a("s_cbranch_scc1 L_end")
    a("v_readfirstlane_b32 s69, v0")
    a(f"v_mov_b32 v{FLG}, {LFLAG:#x}")
    a("v_mov_b32 v24, 0")
    a("v_mov_b32 v25, 0")
    a("s_cmp_ge_u32 s69, 256")
    a("s_cbranch_scc0 L_worker")
    a(f"ds_write_b64 v{FLG}, v[24:25]")
    a(f"ds_write_b64 v{FLG}, v[24:25] offset:8")
    if o["ctl"]:
        a(f"ds_write_b64 v{FLG}, v[24:25] offset:16")
    a("s_waitcnt lgkmcnt(0)")
    a("s_barrier")
    a("s_branch L_helper")
    a("L_worker:")
    st(a, o, 0)
    ids(a, o)
    a(f"v_lshrrev_b32 v{WAVE}, 6, v0")
    a(f"v_and_b32 v{LANE}, 63, v0")
    if o["alt"] == 2:
        a(f"v_lshrrev_b32 v{X0}, 7, v0")
        a(f"v_bfe_u32 v{X1}, v0, 6, 1")
        a(f"v_lshlrev_b32 v{X1}, 12, v{X1}")
        a(f"v_lshl_add_u32 v14, v{X0}, 14, v{X1}")
    else:
        a(f"v_lshlrev_b32 v14, 13, v{WAVE}")
    a(f"v_lshl_add_u32 v{VV}, v{LANE}, 4, v14")
    a(f"v_bfe_u32 v{X0}, v0, 4, 2")
    a(f"v_and_b32 v{X1}, 3, v0")
    a(f"v_lshlrev_b32 v{M}, 4, v{X1}")
    a(f"v_lshl_add_u32 v{M}, v{X0}, 6, v{M}")
    a(f"v_bfe_u32 v{X1}, v0, 2, 2")
    a(f"v_lshl_add_u32 v{VK}, v{X1}, 8, v{M}")
    a(f"v_add_u32 v{VK}, v14, v{VK}")
    a(f"v_and_b32 v{X1}, 7, v0")
    a(f"v_lshlrev_b32 v{STA}, 4, v{X1}")
    a(f"v_lshlrev_b32 v{X1}, 8, v{X1}")
    a(f"v_lshl_add_u32 v{X1}, v{X0}, 6, v{X1}")
    a(f"v_bfe_u32 v{X0}, v0, 3, 1")
    a(f"v_lshl_add_u32 v{X1}, v{X0}, 4, v{X1}")
    a(f"v_lshrrev_b32 v{X0}, 3, v0")
    a(f"v_lshl_add_u32 v{STA}, v{X0}, 12, v{STA}")
    if o["alt"] == 1:
        a(f"v_xor_b32 v14, 0x2000, v{VK}")
        a(f"v_xor_b32 v15, 0x2000, v{VV}")
    a("s_lshl_b32 s3, s22, 23")
    a("s_lshl_b32 s40, s23, 18")
    a("s_add_u32 s3, s3, s40")
    a("s_lshl_b32 s41, s22, 11")
    a("s_mov_b32 s26, 0x40000")
    a("s_mov_b32 s27, 0x20000")
    a("s_mov_b32 s34, 0x4000")
    a("s_mov_b32 s35, 0x20000")
    a(f"s_movk_i32 s91, {0x2000 if o['alt'] == 2 else 0x1000:#x}")
    a("s_waitcnt lgkmcnt(0)")
    st(a, o, 1)
    a("s_add_u32 s24, s6, s3")
    a("s_addc_u32 s25, s7, 0")

    def load(n):
        strm, t, i = n >> 6, (n >> 3) & 7, n & 7
        buf = RING + 4 * (n % RN)
        voff, sb = (VK, 24) if strm == 0 else (VV, 28)
        hi = 8192 if o["alt"] == 2 else 4096
        if o["alt"] == 1 and (t & 1):
            voff = 14 + strm
        if t == 0:
            so = "0" if i < 4 else "s91"
        else:
            if i % 4 == 0:
                a(f"s_mov_b32 s90, {t*32768 + (i>>2)*hi:#x}")
            so = "s90"
        a(f"buffer_load_dwordx4 {vr(buf,4)}, v{voff}, s[{sb}:{sb+3}], {so} offen offset:{(i&3)*1024} {nt}")

    load(0)
    a("s_mov_b32 s32, s4")
    a("s_mov_b32 s33, s5")
    a(f"buffer_load_dwordx4 {vr(Q0,4)}, v{X1}, s[32:35], s41 offen")
    a(f"buffer_load_dwordx4 {vr(Q0+4,4)}, v{X1}, s[32:35], s41 offen offset:32")
    W0N = o["w0"] or W
    for n in range(1, W0N):
        load(n)
    if not o["probe"]:
        st(a, o, 2)
    a("s_mov_b32 s36, s20")
    a("s_mov_b32 s37, s21")
    a(f"s_mov_b32 s38, {WS_BYTES:#x}")
    a("s_mov_b32 s39, 0x20000")
    a("s_lshl_b32 s92, s22, 17")
    a("s_lshl_b32 s95, s23, 7")
    a("s_add_u32 s92, s92, s95")
    if not o["clrat"]:
        for r in range(4):
            a(f"v_mov_b32 v{L0+r}, -1")
        a(f"buffer_store_dwordx4 {vr(L0,4)}, v{STA}, s[36:39], s92 offen")
    a("s_cmp_eq_u32 s69, 64")
    a("s_cbranch_scc0 L_side_done")
    srd(a, 48, 10, 2048)
    a("s_lshl_b32 s61, s22, 8")
    a(f"buffer_load_dwordx4 {vr(KT,4)}, v{M}, s[48:51], s61 offen")
    a("L_side_done:")
    a("s_add_u32 s28, s8, s3")
    a("s_addc_u32 s29, s9, 0")
    a("s_mov_b32 s30, 0x40000")
    a("s_mov_b32 s31, 0x20000")
    a("s_mov_b32 s101, 0xfffffffe")
    a(f"s_mov_b32 s68, {C_SC:#x}")
    a("s_mov_b32 s42, 0x05040100")
    a("s_mov_b32 s43, 0x07060302")
    if o["we"]:
        a("s_getreg_b32 s57, hwreg(HW_REG_XCC_ID, 0, 3)")
        a(f"s_lshr_b32 s57, {o['fastmask']:#x}, s57")
        a("s_and_b32 vcc_lo, s57, 1")
        a("s_mov_b32 vcc_hi, 0")
    a(f"v_mov_b32 v{C1}, 1")
    a(f"v_and_b32 v{MWR}, 15, v0")
    a(f"v_lshlrev_b32 v{MWR}, 4, v{MWR}")
    a(f"v_lshl_add_u32 v{MWR}, v{WAVE}, 2, v{MWR}")
    a(f"v_lshrrev_b32 v{FROW}, 5, v0")
    a(f"v_lshlrev_b32 v{FROW}, 4, v{FROW}")
    a(f"v_and_b32 v{OADR}, 7, v0")
    a(f"v_mul_u32_u24 v{OADR}, 528, v{OADR}")
    a(f"v_lshl_add_u32 v{OADR}, v{WAVE}, 12, v{OADR}")
    a(f"v_bfe_u32 v{X0}, v0, 4, 2")
    a(f"v_lshl_add_u32 v{OADR}, v{X0}, 7, v{OADR}")
    a(f"v_and_b32 v{X0}, 8, v0")
    a(f"v_lshlrev_b32 v{X0}, 3, v{X0}")
    a(f"v_xor_b32 v{OADR}, v{X0}, v{OADR}")

    a("s_barrier")
    items = []
    def item(lines, need=-1, cost=None, frees=None):
        if isinstance(lines, str):
            lines = [lines]
        if cost is None:
            cost = sum(10 if l.startswith("v_mfma") else 8 if l.startswith("v_exp") else 4 for l in lines)
        items.append((lines, cost, need, frees))
    def sub(fn, *args, **kw):
        b = Asm()
        fn(b, *args, **kw)
        return [l.strip() for l in b.lines]
    def flagl(off):
        return ["s_mov_b64 exec, 1", f"ds_add_u32 v{FLG}, v{C1} offset:{off}", "s_mov_b64 exec, -1"]
    def KB(j):
        return RING + 4 * (j % RN)
    for j in range(64 + 5):
        need = max(min(j, 63), 1)
        if j < 64:
            i = j % 8
            item(f"v_mfma_f32_16x16x32_bf16 {vr(T0+4*i+2,4)}, {vr(KB(j),4)}, {vr(Q0,4)}, 0", need)
        if 0 <= j - 2 < 64:
            i = (j - 2) % 8
            item(f"v_mfma_f32_16x16x32_bf16 {vr(T0+4*i,4)}, {vr(KB(j-2),4)}, {vr(Q0+4,4)}, {vr(T0+4*i,4)}", need, frees=j - 2)
        jj = j - 5
        if 0 <= jj < 64:
            i = jj % 8
            item(f"v_add_f32_dpp v{S0+jj}, v{T0+4*i+3}, v{T0+4*i+2} row_ror:8 row_mask:0xf bank_mask:0xf", need)
            if jj == 1:
                item(f"v_max_f32 v{M}, v{S0}, v{S0+1}", need)
            elif jj % 2 == 1:
                item(f"v_max3_f32 v{M}, v{S0+jj-1}, v{S0+jj}, v{M}", need)
        if j == W0N + 2:
            item(["s_cmp_eq_u32 s69, 64", "s_cbranch_scc0 L_notree", ";SKIP_BEGIN",
                  f"v_mfma_f32_16x16x32_bf16 {vr(W0+2,4)}, {vr(KT,4)}, {vr(Q0,4)}, 0",
                  f"v_mfma_f32_16x16x32_bf16 {vr(W0,4)}, {vr(KT,4)}, {vr(Q0+4,4)}, {vr(W0,4)}",
                  f"v_and_b32 v{X0}, 15, v0", f"v_lshlrev_b32 v{X0}, 2, v{X0}",
                  f"v_add_f32_dpp v{X1}, v{W0+3}, v{W0+2} row_ror:8 row_mask:0xf bank_mask:0xf",
                  f"ds_write_b32 v{X0}, v{X1} offset:{LT}", ";SKIP_END", "L_notree:"], need, cost=10)
    if o["stamp"] or o["amp"]:
        item(sub(st, o, 3), 63)
    xl = [l for l in sub(xlane_sum_all, [M], X0, [16, 32], op="v_max_f32") if not l.startswith("s_nop")]
    item(xl, 63)
    item([f"v_mov_b32 v{ONE+r}, 0x3f803f80" for r in range(4)] + [f"v_mul_f32 v{M}, s68, v{M}",
          f"ds_write_b32 v{MWR}, v{M} offset:{LM}"], 63)
    for t in range(8):
        for i in range(8):
            item(f"v_fma_f32 v{S0+8*t+i}, v{S0+8*t+i}, s68, -v{M}", 63)
        for i in range(8):
            item(f"v_exp_f32 v{S0+8*t+i}, v{S0+8*t+i}", 63)
        if t > 0:
            for k in range(4 * t - 4, 4 * t):
                item(f"v_cvt_pk_bf16_f32 v{S0+k}, v{S0+2*k}, v{S0+2*k+1}", 63)
        if t > 1:
            c = "0" if t == 2 else vr(L0, 4)
            item(f"v_mfma_f32_16x16x32_bf16 {vr(L0,4)}, {vr(ONE,4)}, {vr(S0+4*(t-2),4)}, {c}", 63)
    for k in range(28, 32):
        item(f"v_cvt_pk_bf16_f32 v{S0+k}, v{S0+2*k}, v{S0+2*k+1}", 63)
    item(f"v_mfma_f32_16x16x32_bf16 {vr(L0,4)}, {vr(ONE,4)}, {vr(S0+24,4)}, {vr(L0,4)}", 63)
    item(f"v_mfma_f32_16x16x32_bf16 {vr(L0,4)}, {vr(ONE,4)}, {vr(S0+28,4)}, {vr(L0,4)}", 63)
    item([f"v_lshlrev_b32 v{X1}, 4, v0", f"ds_write_b32 v{MWR}, v{L0} offset:{LL}"] + flagl(F_ML), 63, cost=60)
    if o["stamp"] or o["amp"]:
        item(sub(st, o, 4), 63)
    for t in range(8):
        if t == o["pollat"] or t == 7:
            item(flagl(F_PROG) + (["s_setprio 2"] if t == 7 and o["eprio"] else []), 63 + 8 * t)
        def mf(j):
            c = "0" if t == 0 else vr(O0 + 4 * j, 4)
            return f"v_mfma_f32_16x16x32_bf16 {vr(O0+4*j,4)}, {vr(W0+4*j,4)}, {vr(S0+4*t,4)}, {c}"
        for m in range(4):
            n0 = 64 + 8 * t + 2 * m
            pm = {}
            for u in range(4):
                for half in range(2):
                    j = 2 * u + half
                    pm[j] = f"v_perm_b32 v{W0+4*j+m}, v{KB(n0+1)+u}, v{KB(n0)+u}, s{42+half}"
            if t == 7 and m == 3:
                order = [0, 4, 1, 5, 2, 6, 3, 7]
                ls = [pm[order[0]], pm[order[1]], pm[order[2]]]
                for x in range(8):
                    ls.append(mf(order[x]))
                    if x + 3 < 8:
                        ls.append(pm[order[x + 3]])
                item(ls, n0 + 1, frees=n0 + 1)
            else:
                item([pm[j] for j in range(8)], n0 + 1, frees=n0 + 1)
        if t < 7:
            for j in range(8):
                item(mf(j), 64 + 8 * t + 7, cost=16)
        if t == 5:
            item([f"v_xor_b32 v{S0+j}, {j<<4}, v{OADR}" for j in range(1, 4)], 64 + 8 * t + 7)
    def dith(n):
        k = (n - o["cp0"]) // o["cpstep"]
        seq = {1: [0], 2: [-1, 1], 3: [-1, 1, 0], 4: [-1, 1 / 3, 1, -1 / 3]}[o["dn"]]
        return o["dith"] * seq[k % len(seq)]
    start = len(a.lines)
    q = 0
    freed = -1
    avail = -1
    for n in range(W0N, 128):
        assert n - RN <= freed, (n, freed)
        we = o["we"]
        if we and n < 128 - o["sprint"] and (o["wfrac"] == 0 or n % o["wfrac"] != 0):
            a(f"s_cbranch_vccnz L_th{n}")
            a(f"s_waitcnt vmcnt({we-1})")
            a(f"L_th{n}:")
        wn = W
        if o["ctl"] and o["cp0"] <= n < 128 - o["sprint"]:
            if (n - o["cp0"]) % o["cpstep"] == 0:
                a("s_waitcnt lgkmcnt(0)")
                a(f"v_readfirstlane_b32 s60, v{KT}")
                a("s_nop 1")
                a("s_sub_u32 s61, s62, s60")
                a("s_cmp_lg_u32 s60, 0")
                a("s_cselect_b32 s61, s61, 0")
                a(f"s_cmp_gt_u32 s61, {int(round(o['c0'] + n * o['slope'] / 10.0 + dith(n)))}")
                a("s_cselect_b64 vcc, -1, 0")
            wlow = int(str(o['wpat'])[0])
            if o["ta"] <= n < o["tb"]:
                wlow = o["tw"]
            if n >= 64 and o["vpat"] != "":
                wlow = max(wlow, int(str(o["vpat"])[n % len(str(o["vpat"]))]))
            if wlow < o["wb"]:
                a(f"s_cbranch_vccnz L_th{n}")
                a(";SKIP_BEGIN")
                a(f"s_waitcnt vmcnt({wlow-1})")
                a(";SKIP_END")
                a(f"L_th{n}:")
            wn = o["wb"]
        elif o["wpat"] != "" and n < 128 - o["sprint"]:
            pat = str(o["wpat"])
            wn = int(pat[n % len(pat)])
            if o["ramp"] != "" and n - W0N < len(str(o["ramp"])):
                wn = int(str(o["ramp"])[n - W0N])
        a(f"s_waitcnt vmcnt({wn-1})")
        if n == o["probe"]:
            st(a, o, 2)
        if o["probes"]:
            pl = [int(x) for x in str(o["probes"]).split("_")]
            if n in pl:
                st(a, o, [1, 2, 3, 4, 6][pl.index(n)], force=True)
        load(n)
        if o["ctl"] and o["cp0"] <= n + 1 < 128 - o["sprint"] and (n + 1 - o["cp0"]) % o["cpstep"] == 0:
            a("s_memrealtime s[62:63]")
            a(f"ds_read_b32 v{KT}, v{FLG} offset:{F_T0}")
        if n == o["clrat"]:
            for r in range(4):
                a(f"v_mov_b32 v{KT+r}, -1")
            a(f"buffer_store_dwordx4 {vr(KT,4)}, v{STA}, s[36:39], s92 offen {o['clrsc']}")
        if n == o["vtouch"]:
            a("s_mov_b64 exec, 1")
            a(f"buffer_load_dword v{KT+1}, v{VV}, s[28:31], 0 offen")
            a("s_mov_b64 exec, -1")
        avail = max(avail, n - wn)
        budget = o["budget"]
        while q < len(items) and items[q][2] <= avail and budget > 0:
            for l in items[q][0]:
                a(l)
            budget -= items[q][1]
            if items[q][3] is not None:
                freed = items[q][3]
            q += 1
    while q < len(items):
        if items[q][2] > avail:
            avail = items[q][2]
            a(f"s_waitcnt vmcnt({127-avail})")
        for l in items[q][0]:
            a(l)
        q += 1
    st(a, o, 5)
    for j in range(4):
        for r in range(4):
            a(f"v_mov_b32_dpp v{O0+4*j+r}, v{O0+4*(j+4)+r} row_shr:8 row_mask:0xf bank_mask:0xc")
        a(f"ds_write_b128 v{OADR if j == 0 else S0+j}, {vr(O0+4*j,4)}")
    a.lines[start:] = hz.fix(a.lines[start:])
    a("s_waitcnt lgkmcnt(0)")
    a("s_barrier")
    OR, FR = RING, RING + 16
    a(f"ds_read_b128 {vr(FR,4)}, v{FROW} offset:{LF}")
    for w in range(4):
        a(f"ds_read_b128 {vr(OR+4*w,4)}, v{X1} offset:{4096*w}")
    a(f"ds_read_b32 v{X0}, v{FLG} offset:{F_MODE}")
    fine = not (o["stamp"] or o["amp"])
    for w in range(4):
        a(f"s_waitcnt lgkmcnt({4-w})" if fine else "s_waitcnt lgkmcnt(0)")
        if o["pk"]:
            for r in (0, 2):
                a(pkfma(OR + r, OR + 4 * w + r, FR + w, None if w == 0 else OR + r))
        else:
            for r in range(4):
                if w == 0:
                    a(f"v_mul_f32 v{OR+r}, v{FR}, v{OR+r}")
                else:
                    a(f"v_fmac_f32 v{OR+r}, v{FR+w}, v{OR+4*w+r}")
    for r in range(4):
        a(f"v_min_u32 v{OR+r}, s101, v{OR+r}")
    a(f"buffer_store_dwordx4 {vr(OR,4)}, v{STA}, s[36:39], s92 offen")
    st(a, o, 6)
    a("s_waitcnt lgkmcnt(0)")
    a(f"v_readfirstlane_b32 s94, v{X0}")
    a(f"s_add_u32 s92, s92, {PB_OFF:#x}")
    a("s_nop 1")
    a("s_cmp_eq_u32 s94, 1")
    a("s_cbranch_scc1 L_fin")
    a(f"buffer_store_dwordx4 {vr(OR,4)}, v{STA}, s[36:39], s92 offen sc1")
    a("s_waitcnt vmcnt(0)")
    for l in flagl(F_PB):
        a(l)
    a("s_branch L_fin")

    a("L_helper:")
    o["_helper"] = 1
    if o["x"] == 1:
        a("v_mov_b32 v24, 1")
        a(f"ds_write_b32 v{FLG}, v24 offset:{F_MODE}")
        a("s_waitcnt lgkmcnt(0)")
        a("s_endpgm")
    B = RING
    mk, stv, vt, om, Z0, OA, ox, Mx, L, FV, ROW, FA = (B + i for i in range(2, 14))
    X, ML, F, O, T, Z, OB, MLA, VTA, BP, X2 = B + 16, B + 32, B + 36, B + 44, B + 48, B + 56, B + 60, B + 64, B + 65, B + 66, B + 72
    st(a, o, 0)
    ids(a, o)
    a(f"v_lshrrev_b32 v{WAVE}, 6, v0")
    a(f"v_and_b32 v{LANE}, 63, v0")
    a("s_lshr_b32 s40, s23, 2")
    a("s_and_b32 s41, s23, 3")
    a("s_lshl_b32 s100, s22, 5")
    a("s_lshl_b32 s65, s22, 12")
    a(f"s_add_u32 s65, s65, {ML_OFF:#x}")
    a("s_lshl_b32 s95, s23, 7")
    a("s_add_u32 s93, s65, s95")
    a("s_lshl_b32 s95, s40, 4")
    a("s_add_u32 s65, s65, s95")
    a("s_lshl_b32 s60, s22, 3")
    a("s_add_u32 s60, s60, s40")
    a("s_lshl_b32 s60, s60, 8")
    a("s_lshl_b32 s61, s22, 8")
    a("s_lshl_b32 s67, s41, 6")
    a("s_add_u32 s63, s61, s67")
    a("s_add_u32 s66, s60, s67")
    a("s_lshl_b32 s64, s22, 17")
    a("s_lshl_b32 s67, s23, 12")
    a("s_add_u32 s64, s64, s67")
    a("s_lshr_b32 s62, s22, 2")
    a("s_lshl_b32 s62, s62, 4")
    for d, n in ((36, WS_BYTES), (44, 0x4000), (96, 256)):
        a(f"s_mov_b32 s{d+2}, {n:#x}")
        a(f"s_mov_b32 s{d+3}, 0x20000")
    a(f"v_mov_b32 v{Z0}, 0")
    a(f"v_and_b32 v{X0}, 7, v{LANE}")
    a(f"v_lshlrev_b32 v{MLA}, 4, v{X0}")
    a(f"v_xor_b32 v{OA}, s40, v{X0}")
    a(f"v_lshlrev_b32 v{OA}, 1, v{OA}")
    a(f"v_bfe_u32 v{X1}, v{LANE}, 3, 2")
    a(f"v_lshl_add_u32 v{VTA}, v{X1}, 4, v{OA}")
    a(f"v_bfe_u32 v{X1}, v{LANE}, 4, 1")
    a(f"v_lshl_add_u32 v{OA}, v{X1}, 5, v{OA}")
    a(f"v_bfe_u32 v{X1}, v{LANE}, 5, 1")
    a(f"v_lshl_add_u32 v{OA}, v{X1}, 4, v{OA}")
    a(f"v_lshrrev_b32 v{X1}, 3, v{LANE}")
    a(f"v_lshlrev_b32 v{ox}, 9, v{X1}")
    a(f"v_lshl_add_u32 v{ox}, v{X0}, 4, v{ox}")
    a(f"v_lshlrev_b32 v{BP}, 4, v{X1}")
    a(f"v_and_b32 v{om}, 31, v{LANE}")
    a(f"v_lshlrev_b32 v{om}, 7, v{om}")
    a(f"v_and_b32 v{ROW}, 15, v{LANE}")
    a(f"v_lshlrev_b32 v{ROW}, 4, v{ROW}")
    a(f"s_mov_b32 s58, {o['maxspin']}")
    a("s_getreg_b32 s57, hwreg(HW_REG_XCC_ID, 0, 4)")
    if o["fakexcc"]:
        a("s_lshr_b32 s57, s2, 3")
        a("s_and_b32 s57, s57, 1")
    a("s_waitcnt lgkmcnt(0)")
    st(a, o, 1)
    a("s_load_dword s56, s[14:15], 0")
    a("s_add_u32 s12, s12, s63")
    a("s_addc_u32 s13, s13, 0")
    a("s_load_dwordx8 s[24:31], s[12:13], 0")
    a("s_load_dwordx8 s[48:55], s[12:13], 32")
    a("s_mov_b32 s36, s20")
    a("s_mov_b32 s37, s21")
    a("s_mov_b32 s44, s16")
    a("s_mov_b32 s45, s17")
    a("s_mov_b32 s96, s18")
    a("s_mov_b32 s97, s19")
    a("s_cmp_eq_u32 s23, 0")
    a("s_cbranch_scc0 L_nolead")
    for r in range(4):
        a(f"v_mov_b32 v{Z+r}, -1")
    a(f"v_lshlrev_b32 v{FA}, 4, v{LANE}")
    if o["ctl"]:
        a("s_or_b32 s94, s86, 1")
        a(f"v_mov_b32 v{FV}, s94")
    else:
        a(f"v_mov_b32 v{FV}, 1")
    a("s_setprio 3")
    for k in range(4):
        a(f"buffer_store_dwordx4 {vr(Z,4)}, v{FA}, s[36:39], s93 offen offset:{1024*k} sc1")
    a("s_waitcnt vmcnt(0)")
    a("s_mov_b64 exec, 1")
    a(f"buffer_store_dword v{FV}, v{Z0}, s[96:99], s100 offen sc1")
    a("s_mov_b64 exec, -1")
    a("s_setprio 0")
    a("L_nolead:")
    a("s_waitcnt lgkmcnt(0)")
    for i in range(16):
        a(f"v_writelane_b32 v{X0}, s{24+i if i < 8 else 40+i}, {i}")
    a(f"v_and_b32 v{X1}, 0x3c, v{VTA}")
    a(f"ds_bpermute_b32 v{vt}, v{X1}, v{X0}")
    a(f"v_and_b32 v{X1}, 2, v{VTA}")
    a(f"v_lshlrev_b32 v{X1}, 3, v{X1}")
    a("s_lshr_b32 s56, s56, s62")
    a("s_lshl_b32 s56, s56, 16")
    a(f"v_sub_f32 v{mk}, 1.0, s56")
    a(f"v_mul_f32 v{mk}, {C_MASK:#x}, v{mk}")
    a("s_lshl_b32 s94, s40, 2")
    a("s_waitcnt lgkmcnt(0)")
    a(f"v_lshrrev_b32 v{vt}, v{X1}, v{vt}")
    a(f"v_lshlrev_b32 v{vt}, 16, v{vt}")
    a(f"v_mov_b32 v{VTA}, s94")
    a("s_mov_b32 s101, 0xfffffffe")

    def ldsspin(off, val, lab, out):
        a(f"{lab}:")
        a("s_sub_u32 s58, s58, 1")
        a(f"s_cbranch_scc1 {out}")
        a(f"s_sleep {o['ldssleep']}")
        a(f"ds_read_b32 v{X0}, v{FLG} offset:{off}")
        a("s_waitcnt lgkmcnt(0)")
        a(f"v_readfirstlane_b32 s94, v{X0}")
        a("s_nop 2")
        a(f"s_cmp_ge_u32 s94, {val}")
        a(f"s_cbranch_scc0 {lab}")

    def dbgword(off):
        a(f"buffer_load_dword v{FV}, v{Z0}, s[96:99], s100 offen offset:{off} sc1")
        a("s_waitcnt vmcnt(0)")
        a(f"v_readfirstlane_b32 s94, v{FV}")
        a("s_nop 2")

    if o["x"] == 4:
        ldsspin(F_PROG, 8, "L_spx", "L_giveup")
        a("v_mov_b32 v24, 1")
        a(f"ds_write_b32 v{FLG}, v24 offset:{F_MODE}")
        a("s_waitcnt lgkmcnt(0)")
        a("s_endpgm")
    if o["ctl"]:
        a(f"v_and_b32 v{FA}, 7, v{LANE}")
        a(f"v_lshlrev_b32 v{FA}, 5, v{FA}")
        a(f"s_sleep {o['leadsleep']}")
        a("L_lead:")
        a("s_sub_u32 s58, s58, 1")
        a("s_cbranch_scc1 L_giveup")
        a(f"s_sleep {o['leadsleep2']}")
        a("s_setprio 3")
        a(f"buffer_load_dword v{FV}, v{FA}, s[96:99], 0 offen sc1")
        a("s_waitcnt vmcnt(0)")
        a("s_setprio 0")
        a(f"v_cmp_eq_u32 vcc, 0, v{FV}")
        a("s_cbranch_vccnz L_lead")
        a(f"v_subrev_u32 v{FV}, s86, v{FV}")
        a("s_nop 1")
        if o["t0mean"]:
            xlane_sum_all(a, [FV], T, [1, 2, 4], op="v_add_u32")
            a(f"v_ashrrev_i32 v{FV}, 3, v{FV}")
        else:
            xlane_sum_all(a, [FV], T, [1, 2, 4], op="v_min_i32")
        a(f"v_add_u32 v{FV}, s86, v{FV}")
        a(f"v_or_b32 v{FV}, 1, v{FV}")
        a(f"ds_write_b32 v{FLG}, v{FV} offset:{F_T0}")
    else:
        a("L_lead:")
        a("s_sub_u32 s58, s58, 1")
        a("s_cbranch_scc1 L_giveup")
        a(f"s_sleep {o['leadsleep']}")
        a("s_setprio 3")
        dbgword(0)
        a("s_setprio 0")
        a("s_cmp_eq_u32 s94, 0")
        a("s_cbranch_scc1 L_lead")
    if o["x"] == 5:
        a("v_mov_b32 v24, 1")
        a(f"ds_write_b32 v{FLG}, v24 offset:{F_MODE}")
        a("s_waitcnt lgkmcnt(0)")
        a("s_endpgm")
    st(a, o, 2)
    ldsspin(F_ML, 4, "L_sp1", "L_giveup")
    a(f"ds_read_b128 {vr(T,4)}, v{ROW} offset:{LM}")
    a(f"ds_read_b128 {vr(T+4,4)}, v{ROW} offset:{LL}")
    a(f"ds_read_b32 v{stv}, v{VTA} offset:{LT}")
    a("s_waitcnt lgkmcnt(0)")
    a(f"v_max3_f32 v{Z}, v{T}, v{T+1}, v{T+2}")
    a(f"v_max_f32 v{Z}, v{T+3}, v{Z}")
    for w in range(4):
        a(f"v_sub_f32 v{T+w}, v{T+w}, v{Z}")
    for w in range(4):
        a(f"v_exp_f32 v{T+w}, v{T+w}")
    a(f"v_mov_b32 v{Z+2}, s57")
    a(f"v_mov_b32 v{Z+3}, 0")
    a(f"ds_write_b128 v{ROW}, {vr(T,4)} offset:{LF}")
    a(f"v_mul_f32 v{Z+1}, v{T}, v{T+4}")
    for w in range(1, 4):
        a(f"v_fmac_f32 v{Z+1}, v{T+w}, v{T+4+w}")
    a(f"v_min_u32 v{Z}, s101, v{Z}")
    a(f"v_min_u32 v{Z+1}, s101, v{Z+1}")
    a("s_setprio 3")
    a("s_mov_b64 exec, 0xff")
    a(f"buffer_store_dwordx4 {vr(Z,4)}, v{MLA}, s[36:39], s93 offen sc1")
    a("s_mov_b64 exec, -1")
    a("s_setprio 0")
    a(f"v_mul_f32 v{stv}, {C_SC:#x}, v{stv}")
    a(f"v_add_f32 v{stv}, v{stv}, v{mk}")
    if o["x"] == 2:
        a("v_mov_b32 v24, 1")
        a(f"ds_write_b32 v{FLG}, v24 offset:{F_MODE}")
        a("s_waitcnt lgkmcnt(0)")
        a("s_endpgm")
    st(a, o, 3)
    ldsspin(F_PROG, 1, "L_sp2", "L_giveup")
    st(a, o, 4)
    a("s_setprio 3")
    a("s_mov_b32 s88, 0")
    a("L_mlpoll:")
    a("s_sub_u32 s58, s58, 1")
    a("s_cbranch_scc1 L_giveup2")
    a(f"buffer_load_dwordx4 {vr(ML,4)}, v{om}, s[36:39], s65 offen sc1")
    a("s_waitcnt vmcnt(0)")
    a(f"v_max3_u32 v{X0}, v{ML}, v{ML+1}, v{ML+2}")
    a(f"v_cmp_eq_u32 vcc, -1, v{X0}")
    a("s_cbranch_vccz L_mlgot")
    a("s_cmp_eq_u32 s88, 0")
    a("s_cbranch_scc0 L_mlpoll")
    a(f"s_sleep {o['mlsleep']}")
    a(f"ds_read_b32 v{X0}, v{FLG} offset:{F_PROG}")
    a("s_waitcnt lgkmcnt(0)")
    a(f"v_readfirstlane_b32 s95, v{X0}")
    a("s_nop 2")
    a("s_cmp_le_u32 s95, 4")
    a("s_cbranch_scc1 L_mlpoll")
    a("s_barrier")
    a("s_mov_b32 s88, 1")
    a("s_branch L_mlpoll")
    a("L_mlgot:")
    a(f"v_cmp_ne_u32 vcc, s57, v{ML+2}")
    a(f"v_max_f32 v{Mx}, v{ML}, v{stv}")
    a("s_nop 0")
    a("s_cmp_eq_u64 vcc, 0")
    a("s_cselect_b32 s56, 1, 0")
    a(f"v_mov_b32 v{X1}, s56")
    a(f"ds_write_b32 v{FLG}, v{X1} offset:{F_MODE}")
    xlane_sum_all(a, [Mx], T, [1, 2, 4, 8, 16], op="v_max_f32")
    a(f"v_sub_f32 v{F+5}, v{ML}, v{Mx}")
    a(f"v_sub_f32 v{F+4}, v{stv}, v{Mx}")
    a(f"v_exp_f32 v{F+5}, v{F+5}")
    a(f"v_exp_f32 v{F+4}, v{F+4}")
    a("s_nop 0")
    a(f"v_mul_f32 v{L}, v{F+5}, v{ML+1}")
    a("s_nop 1")
    xlane_sum_all(a, [L], T, [1, 2, 4, 8, 16])
    a(f"v_add_f32 v{L}, v{L}, v{F+4}")
    a(f"v_rcp_f32 v{L}, v{L}")
    a("s_nop 0")
    a(f"v_mul_f32 v{F+5}, v{F+5}, v{L}")
    a(f"v_mul_f32 v{F+4}, v{F+4}, v{L}")
    for k in range(4):
        a(f"ds_bpermute_b32 v{F+k}, v{BP}, v{F+5} offset:{4*k}")
    a(f"v_mul_f32 v{X0}, v{F+4}, v{vt}")
    for r in range(4):
        a(f"v_mov_b32 v{OB+r}, 0")
    for r in range(4):
        a(f"s_mov_b64 exec, {0xff << (8*r):#x}") if r < 3 else a("s_mov_b32 exec_lo, 0xff000000")
        a(f"v_mov_b32 v{OB+r}, v{X0}")
    a("s_mov_b64 exec, -1")
    a("s_waitcnt lgkmcnt(0)")
    if o["x"] == 3:
        a("s_endpgm")
    st(a, o, 5)
    a("s_cmp_eq_u32 s56, 1")
    a("s_cbranch_scc1 L_poll")
    a("s_cmp_eq_u32 s88, 0")
    a("s_cbranch_scc0 L_postbar")
    a("s_barrier")
    a("s_mov_b32 s88, 1")
    a("L_postbar:")
    ldsspin(F_PB, 4, "L_sp4", "L_fin")
    a(f"v_mov_b32 v{X0}, 1")
    a("s_mov_b64 exec, 1")
    a(f"buffer_atomic_add v{X0}, v{Z0}, s[96:99], s100 offen offset:4 sc1")
    a("s_mov_b64 exec, -1")
    a("L_c2:")
    a("s_sub_u32 s58, s58, 1")
    a("s_cbranch_scc1 L_fin")
    dbgword(4)
    a("s_cmp_ge_u32 s94, 32")
    a("s_cbranch_scc0 L_c2")
    a(f"s_add_u32 s64, s64, {PB_OFF:#x}")

    def finalmath(b, Xb):
        if o["pk"]:
            for k in range(4):
                for r in (0, 2):
                    b(pkfma(O + r, Xb + 4 * k + r, F + k, (OB if k == 0 else O) + r))
        else:
            for r in range(4):
                b(f"v_fma_f32 v{O+r}, v{F}, v{Xb+r}, v{OB+r}")
            for k in range(1, 4):
                for r in range(4):
                    b(f"v_fmac_f32 v{O+r}, v{F+k}, v{Xb+4*k+r}")
        b(f"v_permlane32_swap_b32 v{O}, v{O+1}")
        b(f"v_permlane32_swap_b32 v{O+2}, v{O+3}")
        b(f"v_add_f32 v{O}, v{O}, v{O+1}")
        b(f"v_add_f32 v{O+2}, v{O+2}, v{O+3}")
        b(f"v_permlane16_swap_b32 v{O}, v{O+2}")
        b(f"v_add_f32 v{O}, v{O}, v{O+2}")
        b(f"v_add_f32_dpp v{O}, v{O}, v{O} row_ror:8 row_mask:0xf bank_mask:0xf")
        b(f"v_cvt_pk_bf16_f32 v{O}, v{O}, v{O}")
    if o["incr"]:
        a("L_poll:")
        for k in range(4):
            a(f"s_mov_b64 s[{24+2*k}:{25+2*k}], -1")
        a("L_poll2:")
        a("s_sub_u32 s58, s58, 1")
        a("s_cbranch_scc1 L_giveup2")
        for k in range(4):
            a(f"s_mov_b64 exec, s[{24+2*k}:{25+2*k}]")
            a(f"s_cbranch_execz L_pk{k}")
            a(f"buffer_load_dwordx4 {vr(X+4*k,4)}, v{ox}, s[36:39], s64 offen offset:{128*k} sc1")
            a(f"L_pk{k}:")
        a("s_mov_b64 exec, -1")
        a("s_waitcnt vmcnt(0)")
        b = Asm()
        for k in range(4):
            b(f"v_max3_u32 v{T+k}, v{X+4*k}, v{X+4*k+1}, v{X+4*k+2}")
        for k in range(4):
            b(f"v_max_u32 v{T+k}, v{T+k}, v{X+4*k+3}")
        for k in range(4):
            b(f"v_cmp_eq_u32 s[{24+2*k}:{25+2*k}], -1, v{T+k}")
        c = Asm()
        finalmath(c, X)
        nh = 2 if o["pk"] else 4
        b.lines += c.lines[:nh]
        b("s_or_b64 s[32:33], s[24:25], s[26:27]")
        b("s_or_b64 s[34:35], s[28:29], s[30:31]")
        b("s_or_b64 s[32:33], s[32:33], s[34:35]")
        b("s_cselect_b32 s94, s88, 0")
        b("s_cmp_eq_u32 s94, 1")
        b("s_cbranch_scc1 L_poll3" if o["boff"] else "s_cbranch_scc1 L_poll2")
        b.lines += c.lines[nh:]
        a.lines += hz.fix(b.lines)
        a("s_cmp_eq_u64 s[32:33], 0")
        a("s_cbranch_scc1 L_done")
        a("s_barrier")
        a("s_mov_b32 s88, 1")
        st(a, o, 6)
        a("s_branch L_poll2")
        if o["boff"]:
            a("L_poll3:")
            a("s_bcnt1_i32_b64 s94, s[32:33]")
            a(f"s_cmp_le_u32 s94, {o['boffn']}")
            a("s_cbranch_scc1 L_poll2")
            a(f"s_sleep {o['boff']}")
            a("s_branch L_poll2")
    else:
        def pollld(Xb):
            for k in range(4):
                a(f"buffer_load_dwordx4 {vr(Xb+4*k,4)}, v{ox}, s[36:39], s64 offen offset:{128*k} sc1")
        def pollmath(Xb):
            b = Asm()
            sent_check(b, Xb, 16, X0, X1)
            finalmath(b, Xb)
            a.lines += hz.fix(b.lines)
        a("L_poll:")
        pollld(X)
        a("L_poll2:")
        a("s_sub_u32 s58, s58, 1")
        a("s_cbranch_scc1 L_giveup2")
        pollld(X2)
        a("s_waitcnt vmcnt(4)")
        pollmath(X)
        a("s_cbranch_vccz L_done")
        pollld(X)
        a("s_waitcnt vmcnt(4)")
        pollmath(X2)
        a("s_cbranch_vccz L_done")
        a("s_cmp_eq_u32 s88, 0")
        a("s_cbranch_scc0 L_poll2")
        a("s_waitcnt vmcnt(0)")
        if o["eprio"]:
            a("s_setprio 0")
        a("s_barrier")
        a("s_mov_b32 s88, 1")
        st(a, o, 6)
        a("s_branch L_poll")
    a("L_done:")
    a(f"buffer_store_short v{O}, v{OA}, s[44:47], s66 offen {o['outsc']}")
    a("L_giveup2:")
    a("s_cmp_eq_u32 s88, 0")
    a("s_cbranch_scc0 L_fin")
    a("L_giveup:")
    a("s_barrier")
    a("L_fin:")
    if o["stamp"]:
        st(a, o, 7)
        dump_stamps(a, o, 8, WAVE, nwaves=NW)
    if o["amp"]:
        st(a, o, 7)
        a("s_waitcnt lgkmcnt(0)")
        j = o["amp"]
        a(f"s_sub_u32 s60, s{70+2*j}, s70")
        a(f"s_mul_i32 s60, s60, {o['mult']}")
        a(f"s_add_u32 s60, s60, {o['base']}")
        if not o["amph"]:
            a("s_cmp_ge_u32 s69, 256")
            a("s_cbranch_scc1 L_end")
        a("L_spin:")
        a("s_sleep 2")
        a("s_memrealtime s[88:89]")
        a("s_waitcnt lgkmcnt(0)")
        a("s_sub_u32 s88, s88, s70")
        a("s_cmp_lt_u32 s88, s60")
        a("s_cbranch_scc1 L_spin")
    a("L_end:")
    a("s_endpgm")


def gen9(o):
    a = Asm()
    main = NAME + "_kernel"
    a.lines.append((HEADER + f"; @launch grid=(256,1,1) block=(320,1,1) lds=17408" + DOC).rstrip())
    a('.amdgcn_target "amdgcn-amd-amdhsa--gfx950"')
    a(".text")
    a(f".globl {main}")
    kernel(a, o, main)
    a('.section .rodata,"a"')
    a(".p2align 6")
    kd(a, main, 256)
    return a.text()


DEF = dict(nt="nt", map=1, stamp=0, amp=0, amph=0, mult=0, base=6000, maxspin=200000, mlsleep=16, ldssleep=4,
           pollat=4, fakexcc=0, w=8, budget=160, outsc="", we=0, wfrac=0, sprint=8, fastmask=0xaa, leadsleep=40, wpat='5', x=0, incr=0, alt=1, boff=0, boffn=24, probe=0, w0=0, ramp='7777777766666666', ctl=1, cp0=24, cpstep=4, c0=25, slope=137, wb=8, leadsleep2=16, dith=0, dn=2, t0mean=1, pk=1, probes='', ta=0, tb=0, tw=7, vtouch=0, vpat='', clrat=57, clrsc='', eprio=0)
if __name__ == "__main__":
    o = dict(DEF)
    for kv in sys.argv[2:]:
        k, v = kv.split("=")
        assert k in o, k
        o[k] = int(v, 0) if v.lstrip("-").replace("0x", "").isalnum() and v.lstrip("-")[0].isdigit() else v.replace("+", " ")
    open(sys.argv[1], "w").write(gen9(o))
```

```python
import sys
from gen import Asm, vr, srd, HEADER, NAME, C_SC, C_MASK, xlane_sum_all, dump_stamps, kd, ids
from gen4 import sent_check
import hz

NW = 5
DOC = "\n;     In-flight depth is 5 loads per wave, 8 when the wave is behind a common schedule (origin: mean start time of the\n;  hand-offs      : (max,sum) table: cleared to all-ones by the group leader, announced in d_debug, write-through stores,\n;     every word validates itself. Partial rows: if the table shows the whole group on one XCD they go through that L2\n"
PO_BYTES = 8 * 131072
PB_OFF = PO_BYTES
ML_OFF = 2 * PO_BYTES
WS_BYTES = ML_OFF + 8 * 4096
LM, LL, LF, LT, LFLAG = 0x4000, 0x4100, 0x4200, 0x4300, 0x4380
F_ML, F_PROG, F_MODE, F_PB, F_T0 = 0, 4, 8, 12, 16


def st(a, o, idx, force=False):
    if o.get("probes") and not force and idx in (1, 2, 3, 4, 6) and not o.get("_helper"):
        return
    if o["stamp"] or o["amp"]:
        a(f"s_memrealtime s[{70+2*idx}:{71+2*idx}]")


def pkfma(d, x, f, c):
    fp, hi = f & ~1, f & 1
    if c is None:
        return f"v_pk_mul_f32 {vr(d,2)}, {vr(x,2)}, {vr(fp,2)} op_sel:[0,{hi}] op_sel_hi:[1,{hi}]"
    return f"v_pk_fma_f32 {vr(d,2)}, {vr(x,2)}, {vr(fp,2)}, {vr(c,2)} op_sel:[0,{hi},0] op_sel_hi:[1,{hi},1]"


def kernel(a, o, label):
    nt = o["nt"]
    W = o["w"]
    RN = 32
    VK, VV, OADR, M, X0, X1, FROW, MWR, STA, WAVE, LANE, FLG, C1 = range(1, 14)
    Q0 = 16
    ONE = 16
    RING = 24
    S0 = 152
    W0 = S0 + 32
    T0 = 216
    O0, L0 = 216, 248
    KT = 252

    a(".p2align 8")
    a(f".type {label},@function")
    a(f"{label}:")
    a("s_load_dwordx16 s[4:19], s[0:1], 0")
    a("s_load_dwordx2 s[20:21], s[0:1], 64")
    if o["ctl"] or o["amp"]:
        a("s_memrealtime s[86:87]")
    a("s_cmp_ge_u32 s2, 256")
    a("s_cbranch_scc1 L_end")
    a("v_readfirstlane_b32 s69, v0")
    a(f"v_mov_b32 v{FLG}, {LFLAG:#x}")
    a("v_mov_b32 v24, 0")
    a("v_mov_b32 v25, 0")
    a("s_cmp_ge_u32 s69, 256")
    a("s_cbranch_scc0 L_worker")
    a(f"ds_write_b64 v{FLG}, v[24:25]")
    a(f"ds_write_b64 v{FLG}, v[24:25] offset:8")
    if o["ctl"]:
        a(f"ds_write_b64 v{FLG}, v[24:25] offset:16")
    a("s_waitcnt lgkmcnt(0)")
    a("s_barrier")
    a("s_branch L_helper")
    a("L_worker:")
    st(a, o, 0)
    ids(a, o)
    a(f"v_lshrrev_b32 v{WAVE}, 6, v0")
    a(f"v_and_b32 v{LANE}, 63, v0")
    if o["alt"] == 2:
        a(f"v_lshrrev_b32 v{X0}, 7, v0")
        a(f"v_bfe_u32 v{X1}, v0, 6, 1")
        a(f"v_lshlrev_b32 v{X1}, 12, v{X1}")
        a(f"v_lshl_add_u32 v14, v{X0}, 14, v{X1}")
    else:
        a(f"v_lshlrev_b32 v14, 13, v{WAVE}")
    a(f"v_lshl_add_u32 v{VV}, v{LANE}, 4, v14")
    a(f"v_bfe_u32 v{X0}, v0, 4, 2")
    a(f"v_and_b32 v{X1}, 3, v0")
    a(f"v_lshlrev_b32 v{M}, 4, v{X1}")
    a(f"v_lshl_add_u32 v{M}, v{X0}, 6, v{M}")
    a(f"v_bfe_u32 v{X1}, v0, 2, 2")
    a(f"v_lshl_add_u32 v{VK}, v{X1}, 8, v{M}")
    a(f"v_add_u32 v{VK}, v14, v{VK}")
    a(f"v_and_b32 v{X1}, 7, v0")
    a(f"v_lshlrev_b32 v{STA}, 4, v{X1}")
    a(f"v_lshlrev_b32 v{X1}, 8, v{X1}")
    a(f"v_lshl_add_u32 v{X1}, v{X0}, 6, v{X1}")
    a(f"v_bfe_u32 v{X0}, v0, 3, 1")
    a(f"v_lshl_add_u32 v{X1}, v{X0}, 4, v{X1}")
    a(f"v_lshrrev_b32 v{X0}, 3, v0")
    a(f"v_lshl_add_u32 v{STA}, v{X0}, 12, v{STA}")
    if o["alt"] == 1:
        a(f"v_xor_b32 v14, 0x2000, v{VK}")
        a(f"v_xor_b32 v15, 0x2000, v{VV}")
    a("s_lshl_b32 s3, s22, 23")
    a("s_lshl_b32 s40, s23, 18")
    a("s_add_u32 s3, s3, s40")
    a("s_lshl_b32 s41, s22, 11")
    a("s_mov_b32 s26, 0x40000")
    a("s_mov_b32 s27, 0x20000")
    a("s_mov_b32 s34, 0x4000")
    a("s_mov_b32 s35, 0x20000")
    a(f"s_movk_i32 s91, {0x2000 if o['alt'] == 2 else 0x1000:#x}")
    a("s_waitcnt lgkmcnt(0)")
    st(a, o, 1)
    a("s_add_u32 s24, s6, s3")
    a("s_addc_u32 s25, s7, 0")

    def load(n):
        strm, t, i = n >> 6, (n >> 3) & 7, n & 7
        buf = RING + 4 * (n % RN)
        voff, sb = (VK, 24) if strm == 0 else (VV, 28)
        hi = 8192 if o["alt"] == 2 else 4096
        if o["alt"] == 1 and (t & 1):
            voff = 14 + strm
        if t == 0:
            so = "0" if i < 4 else "s91"
        else:
            if i % 4 == 0:
                a(f"s_mov_b32 s90, {t*32768 + (i>>2)*hi:#x}")
            so = "s90"
        a(f"buffer_load_dwordx4 {vr(buf,4)}, v{voff}, s[{sb}:{sb+3}], {so} offen offset:{(i&3)*1024} {nt}")

    load(0)
    a("s_mov_b32 s32, s4")
    a("s_mov_b32 s33, s5")
    a(f"buffer_load_dwordx4 {vr(Q0,4)}, v{X1}, s[32:35], s41 offen")
    a(f"buffer_load_dwordx4 {vr(Q0+4,4)}, v{X1}, s[32:35], s41 offen offset:32")
    W0N = o["w0"] or W
    for n in range(1, W0N):
        load(n)
    if not o["probe"]:
        st(a, o, 2)
    a("s_mov_b32 s36, s20")
    a("s_mov_b32 s37, s21")
    a(f"s_mov_b32 s38, {WS_BYTES:#x}")
    a("s_mov_b32 s39, 0x20000")
    a("s_lshl_b32 s92, s22, 17")
    a("s_lshl_b32 s95, s23, 7")
    a("s_add_u32 s92, s92, s95")
    if not o["clrat"]:
        for r in range(4):
            a(f"v_mov_b32 v{L0+r}, -1")
        a(f"buffer_store_dwordx4 {vr(L0,4)}, v{STA}, s[36:39], s92 offen")
    a("s_cmp_eq_u32 s69, 64")
    a("s_cbranch_scc0 L_side_done")
    srd(a, 48, 10, 2048)
    a("s_lshl_b32 s61, s22, 8")
    a(f"buffer_load_dwordx4 {vr(KT,4)}, v{M}, s[48:51], s61 offen")
    a("L_side_done:")
    a("s_add_u32 s28, s8, s3")
    a("s_addc_u32 s29, s9, 0")
    a("s_mov_b32 s30, 0x40000")
    a("s_mov_b32 s31, 0x20000")
    a("s_mov_b32 s101, 0xfffffffe")
    a(f"s_mov_b32 s68, {C_SC:#x}")
    a("s_mov_b32 s42, 0x05040100")
    a("s_mov_b32 s43, 0x07060302")
    if o["we"]:
        a("s_getreg_b32 s57, hwreg(HW_REG_XCC_ID, 0, 3)")
        a(f"s_lshr_b32 s57, {o['fastmask']:#x}, s57")
        a("s_and_b32 vcc_lo, s57, 1")
        a("s_mov_b32 vcc_hi, 0")
    a(f"v_mov_b32 v{C1}, 1")
    a(f"v_and_b32 v{MWR}, 15, v0")
    a(f"v_lshlrev_b32 v{MWR}, 4, v{MWR}")
    a(f"v_lshl_add_u32 v{MWR}, v{WAVE}, 2, v{MWR}")
    a(f"v_lshrrev_b32 v{FROW}, 5, v0")
    a(f"v_lshlrev_b32 v{FROW}, 4, v{FROW}")
    a(f"v_and_b32 v{OADR}, 7, v0")
    a(f"v_mul_u32_u24 v{OADR}, 528, v{OADR}")
    a(f"v_lshl_add_u32 v{OADR}, v{WAVE}, 12, v{OADR}")
    a(f"v_bfe_u32 v{X0}, v0, 4, 2")
    a(f"v_lshl_add_u32 v{OADR}, v{X0}, 7, v{OADR}")
    a(f"v_and_b32 v{X0}, 8, v0")
    a(f"v_lshlrev_b32 v{X0}, 3, v{X0}")
    a(f"v_xor_b32 v{OADR}, v{X0}, v{OADR}")

    a("s_barrier")
    items = []
    def item(lines, need=-1, cost=None, frees=None):
        if isinstance(lines, str):
            lines = [lines]
        if cost is None:
            cost = sum(10 if l.startswith("v_mfma") else 8 if l.startswith("v_exp") else 4 for l in lines)
        items.append((lines, cost, need, frees))
    def sub(fn, *args, **kw):
        b = Asm()
        fn(b, *args, **kw)
        return [l.strip() for l in b.lines]
    def flagl(off):
        return ["s_mov_b64 exec, 1", f"ds_add_u32 v{FLG}, v{C1} offset:{off}", "s_mov_b64 exec, -1"]
    def KB(j):
        return RING + 4 * (j % RN)
    for j in range(64 + 5):
        need = max(min(j, 63), 1)
        if j < 64:
            i = j % 8
            item(f"v_mfma_f32_16x16x32_bf16 {vr(T0+4*i+2,4)}, {vr(KB(j),4)}, {vr(Q0,4)}, 0", need)
        if 0 <= j - 2 < 64:
            i = (j - 2) % 8
            item(f"v_mfma_f32_16x16x32_bf16 {vr(T0+4*i,4)}, {vr(KB(j-2),4)}, {vr(Q0+4,4)}, {vr(T0+4*i,4)}", need, frees=j - 2)
        jj = j - 5
        if 0 <= jj < 64:
            i = jj % 8
            item(f"v_add_f32_dpp v{S0+jj}, v{T0+4*i+3}, v{T0+4*i+2} row_ror:8 row_mask:0xf bank_mask:0xf", need)
            if jj == 1:
                item(f"v_max_f32 v{M}, v{S0}, v{S0+1}", need)
            elif jj % 2 == 1:
                item(f"v_max3_f32 v{M}, v{S0+jj-1}, v{S0+jj}, v{M}", need)
        if j == W0N + 2:
            item(["s_cmp_eq_u32 s69, 64", "s_cbranch_scc0 L_notree", ";SKIP_BEGIN",
                  f"v_mfma_f32_16x16x32_bf16 {vr(W0+2,4)}, {vr(KT,4)}, {vr(Q0,4)}, 0",
                  f"v_mfma_f32_16x16x32_bf16 {vr(W0,4)}, {vr(KT,4)}, {vr(Q0+4,4)}, {vr(W0,4)}",
                  f"v_and_b32 v{X0}, 15, v0", f"v_lshlrev_b32 v{X0}, 2, v{X0}",
                  f"v_add_f32_dpp v{X1}, v{W0+3}, v{W0+2} row_ror:8 row_mask:0xf bank_mask:0xf",
                  f"ds_write_b32 v{X0}, v{X1} offset:{LT}", ";SKIP_END", "L_notree:"], need, cost=10)
    if o["stamp"] or o["amp"]:
        item(sub(st, o, 3), 63)
    xl = [l for l in sub(xlane_sum_all, [M], X0, [16, 32], op="v_max_f32") if not l.startswith("s_nop")]
    item(xl, 63)
    item([f"v_mov_b32 v{ONE+r}, 0x3f803f80" for r in range(4)] + [f"v_mul_f32 v{M}, s68, v{M}",
          f"ds_write_b32 v{MWR}, v{M} offset:{LM}"], 63)
    for t in range(8):
        for i in range(8):
            item(f"v_fma_f32 v{S0+8*t+i}, v{S0+8*t+i}, s68, -v{M}", 63)
        for i in range(8):
            item(f"v_exp_f32 v{S0+8*t+i}, v{S0+8*t+i}", 63)
        if t > 0:
            for k in range(4 * t - 4, 4 * t):
                item(f"v_cvt_pk_bf16_f32 v{S0+k}, v{S0+2*k}, v{S0+2*k+1}", 63)
        if t > 1:
            c = "0" if t == 2 else vr(L0, 4)
            item(f"v_mfma_f32_16x16x32_bf16 {vr(L0,4)}, {vr(ONE,4)}, {vr(S0+4*(t-2),4)}, {c}", 63)
    for k in range(28, 32):
        item(f"v_cvt_pk_bf16_f32 v{S0+k}, v{S0+2*k}, v{S0+2*k+1}", 63)
    item(f"v_mfma_f32_16x16x32_bf16 {vr(L0,4)}, {vr(ONE,4)}, {vr(S0+24,4)}, {vr(L0,4)}", 63)
    item(f"v_mfma_f32_16x16x32_bf16 {vr(L0,4)}, {vr(ONE,4)}, {vr(S0+28,4)}, {vr(L0,4)}", 63)
    item([f"v_lshlrev_b32 v{X1}, 4, v0", f"ds_write_b32 v{MWR}, v{L0} offset:{LL}"] + flagl(F_ML), 63, cost=60)
    if o["stamp"] or o["amp"]:
        item(sub(st, o, 4), 63)
    for t in range(8):
        if t == o["pollat"] or t == 7:
            item(flagl(F_PROG) + (["s_setprio 2"] if t == 7 and o["eprio"] else []), 63 + 8 * t)
        def mf(j):
            c = "0" if t == 0 else vr(O0 + 4 * j, 4)
            return f"v_mfma_f32_16x16x32_bf16 {vr(O0+4*j,4)}, {vr(W0+4*j,4)}, {vr(S0+4*t,4)}, {c}"
        for m in range(4):
            n0 = 64 + 8 * t + 2 * m
            pm = {}
            for u in range(4):
                for half in range(2):
                    j = 2 * u + half
                    pm[j] = f"v_perm_b32 v{W0+4*j+m}, v{KB(n0+1)+u}, v{KB(n0)+u}, s{42+half}"
            if t == 7 and m == 3:
                order = [0, 4, 1, 5, 2, 6, 3, 7]
                ls = [pm[order[0]], pm[order[1]], pm[order[2]]]
                for x in range(8):
                    ls.append(mf(order[x]))
                    if x + 3 < 8:
                        ls.append(pm[order[x + 3]])
                item(ls, n0 + 1, frees=n0 + 1)
            else:
                item([pm[j] for j in range(8)], n0 + 1, frees=n0 + 1)
        if t < 7:
            for j in range(8):
                item(mf(j), 64 + 8 * t + 7, cost=16)
        if t == 5:
            item([f"v_xor_b32 v{S0+j}, {j<<4}, v{OADR}" for j in range(1, 4)], 64 + 8 * t + 7)
    def dith(n):
        k = (n - o["cp0"]) // o["cpstep"]
        seq = {1: [0], 2: [-1, 1], 3: [-1, 1, 0], 4: [-1, 1 / 3, 1, -1 / 3]}[o["dn"]]
        return o["dith"] * seq[k % len(seq)]
    start = len(a.lines)
    q = 0
    freed = -1
    avail = -1
    for n in range(W0N, 128):
        assert n - RN <= freed, (n, freed)
        we = o["we"]
        if we and n < 128 - o["sprint"] and (o["wfrac"] == 0 or n % o["wfrac"] != 0):
            a(f"s_cbranch_vccnz L_th{n}")
            a(f"s_waitcnt vmcnt({we-1})")
            a(f"L_th{n}:")
        wn = W
        if o["ctl"] and o["cp0"] <= n < 128 - o["sprint"]:
            if (n - o["cp0"]) % o["cpstep"] == 0:
                a("s_waitcnt lgkmcnt(0)")
                a(f"v_readfirstlane_b32 s60, v{KT}")
                a("s_nop 1")
                a("s_sub_u32 s61, s62, s60")
                a("s_cmp_lg_u32 s60, 0")
                a("s_cselect_b32 s61, s61, 0")
                a(f"s_cmp_gt_u32 s61, {int(round(o['c0'] + n * o['slope'] / 10.0 + dith(n)))}")
                a("s_cselect_b64 vcc, -1, 0")
            wlow = int(str(o['wpat'])[0])
            if o["ta"] <= n < o["tb"]:
                wlow = o["tw"]
            if n >= 64 and o["vpat"] != "":
                wlow = max(wlow, int(str(o["vpat"])[n % len(str(o["vpat"]))]))
            if wlow < o["wb"]:
                a(f"s_cbranch_vccnz L_th{n}")
                a(";SKIP_BEGIN")
                a(f"s_waitcnt vmcnt({wlow-1})")
                a(";SKIP_END")
                a(f"L_th{n}:")
            wn = o["wb"]
        elif o["wpat"] != "" and n < 128 - o["sprint"]:
            pat = str(o["wpat"])
            wn = int(pat[n % len(pat)])
            if o["ramp"] != "" and n - W0N < len(str(o["ramp"])):
                wn = int(str(o["ramp"])[n - W0N])
        a(f"s_waitcnt vmcnt({wn-1})")
        if n == o["probe"]:
            st(a, o, 2)
        if o["probes"]:
            pl = [int(x) for x in str(o["probes"]).split("_")]
            if n in pl:
                st(a, o, [1, 2, 3, 4, 6][pl.index(n)], force=True)
        load(n)
        if o["ctl"] and o["cp0"] <= n + 1 < 128 - o["sprint"] and (n + 1 - o["cp0"]) % o["cpstep"] == 0:
            a("s_memrealtime s[62:63]")
            a(f"ds_read_b32 v{KT}, v{FLG} offset:{F_T0}")
        if n == o["clrat"]:
            for r in range(4):
                a(f"v_mov_b32 v{KT+r}, -1")
            a(f"buffer_store_dwordx4 {vr(KT,4)}, v{STA}, s[36:39], s92 offen {o['clrsc']}")
        if n == o["vtouch"]:
            a("s_mov_b64 exec, 1")
            a(f"buffer_load_dword v{KT+1}, v{VV}, s[28:31], 0 offen")
            a("s_mov_b64 exec, -1")
        avail = max(avail, n - wn)
        budget = o["budget"]
        while q < len(items) and items[q][2] <= avail and budget > 0:
            for l in items[q][0]:
                a(l)
            budget -= items[q][1]
            if items[q][3] is not None:
                freed = items[q][3]
            q += 1
    while q < len(items):
        if items[q][2] > avail:
            avail = items[q][2]
            a(f"s_waitcnt vmcnt({127-avail})")
        for l in items[q][0]:
            a(l)
        q += 1
    st(a, o, 5)
    for j in range(4):
        for r in range(4):
            a(f"v_mov_b32_dpp v{O0+4*j+r}, v{O0+4*(j+4)+r} row_shr:8 row_mask:0xf bank_mask:0xc")
        a(f"ds_write_b128 v{OADR if j == 0 else S0+j}, {vr(O0+4*j,4)}")
    a.lines[start:] = hz.fix(a.lines[start:])
    a("s_waitcnt lgkmcnt(0)")
    a("s_barrier")
    OR, FR = RING, RING + 16
    a(f"ds_read_b128 {vr(FR,4)}, v{FROW} offset:{LF}")
    for w in range(4):
        a(f"ds_read_b128 {vr(OR+4*w,4)}, v{X1} offset:{4096*w}")
    a(f"ds_read_b32 v{X0}, v{FLG} offset:{F_MODE}")
    fine = not (o["stamp"] or o["amp"])
    for w in range(4):
        a(f"s_waitcnt lgkmcnt({4-w})" if fine else "s_waitcnt lgkmcnt(0)")
        if o["pk"]:
            for r in (0, 2):
                a(pkfma(OR + r, OR + 4 * w + r, FR + w, None if w == 0 else OR + r))
        else:
            for r in range(4):
                if w == 0:
                    a(f"v_mul_f32 v{OR+r}, v{FR}, v{OR+r}")
                else:
                    a(f"v_fmac_f32 v{OR+r}, v{FR+w}, v{OR+4*w+r}")
    for r in range(4):
        a(f"v_min_u32 v{OR+r}, s101, v{OR+r}")
    a(f"buffer_store_dwordx4 {vr(OR,4)}, v{STA}, s[36:39], s92 offen")
    st(a, o, 6)
    a("s_waitcnt lgkmcnt(0)")
    a(f"v_readfirstlane_b32 s94, v{X0}")
    a(f"s_add_u32 s92, s92, {PB_OFF:#x}")
    a("s_nop 1")
    a("s_cmp_eq_u32 s94, 1")
    a("s_cbranch_scc1 L_fin")
    a(f"buffer_store_dwordx4 {vr(OR,4)}, v{STA}, s[36:39], s92 offen sc1")
    a("s_waitcnt vmcnt(0)")
    for l in flagl(F_PB):
        a(l)
    a("s_branch L_fin")

    a("L_helper:")
    o["_helper"] = 1
    if o["x"] == 1:
        a("v_mov_b32 v24, 1")
        a(f"ds_write_b32 v{FLG}, v24 offset:{F_MODE}")
        a("s_waitcnt lgkmcnt(0)")
        a("s_endpgm")
    B = RING
    mk, stv, vt, om, Z0, OA, ox, Mx, L, FV, ROW, FA = (B + i for i in range(2, 14))
    X, ML, F, O, T, Z, OB, MLA, VTA, BP, X2 = B + 16, B + 32, B + 36, B + 44, B + 48, B + 56, B + 60, B + 64, B + 65, B + 66, B + 72
    if o["amp"]:
        a("s_mov_b64 s[70:71], s[86:87]")
    else:
        st(a, o, 0)
    ids(a, o)
    a(f"v_lshrrev_b32 v{WAVE}, 6, v0")
    a(f"v_and_b32 v{LANE}, 63, v0")
    a("s_lshr_b32 s40, s23, 2")
    a("s_and_b32 s41, s23, 3")
    a("s_lshl_b32 s100, s22, 5")
    a("s_lshl_b32 s65, s22, 12")
    a(f"s_add_u32 s65, s65, {ML_OFF:#x}")
    a("s_lshl_b32 s95, s23, 7")
    a("s_add_u32 s93, s65, s95")
    a("s_lshl_b32 s95, s40, 4")
    a("s_add_u32 s65, s65, s95")
    a("s_lshl_b32 s60, s22, 3")
    a("s_add_u32 s60, s60, s40")
    a("s_lshl_b32 s60, s60, 8")
    a("s_lshl_b32 s61, s22, 8")
    a("s_lshl_b32 s67, s41, 6")
    a("s_add_u32 s63, s61, s67")
    a("s_add_u32 s66, s60, s67")
    a("s_lshl_b32 s64, s22, 17")
    a("s_lshl_b32 s67, s23, 12")
    a("s_add_u32 s64, s64, s67")
    a("s_lshr_b32 s62, s22, 2")
    a("s_lshl_b32 s62, s62, 4")
    for d, n in ((36, WS_BYTES), (44, 0x4000), (96, 256)):
        a(f"s_mov_b32 s{d+2}, {n:#x}")
        a(f"s_mov_b32 s{d+3}, 0x20000")
    a(f"v_mov_b32 v{Z0}, 0")
    a(f"v_and_b32 v{X0}, 7, v{LANE}")
    a(f"v_lshlrev_b32 v{MLA}, 4, v{X0}")
    a(f"v_xor_b32 v{OA}, s40, v{X0}")
    a(f"v_lshlrev_b32 v{OA}, 1, v{OA}")
    a(f"v_bfe_u32 v{X1}, v{LANE}, 3, 2")
    a(f"v_lshl_add_u32 v{VTA}, v{X1}, 4, v{OA}")
    a(f"v_bfe_u32 v{X1}, v{LANE}, 4, 1")
    a(f"v_lshl_add_u32 v{OA}, v{X1}, 5, v{OA}")
    a(f"v_bfe_u32 v{X1}, v{LANE}, 5, 1")
    a(f"v_lshl_add_u32 v{OA}, v{X1}, 4, v{OA}")
    a(f"v_lshrrev_b32 v{X1}, 3, v{LANE}")
    a(f"v_lshlrev_b32 v{ox}, 9, v{X1}")
    a(f"v_lshl_add_u32 v{ox}, v{X0}, 4, v{ox}")
    a(f"v_lshlrev_b32 v{BP}, 4, v{X1}")
    a(f"v_and_b32 v{om}, 31, v{LANE}")
    a(f"v_lshlrev_b32 v{om}, 7, v{om}")
    a(f"v_and_b32 v{ROW}, 15, v{LANE}")
    a(f"v_lshlrev_b32 v{ROW}, 4, v{ROW}")
    a(f"s_mov_b32 s58, {o['maxspin']}")
    a("s_getreg_b32 s57, hwreg(HW_REG_XCC_ID, 0, 4)")
    if o["fakexcc"]:
        a("s_lshr_b32 s57, s2, 3")
        a("s_and_b32 s57, s57, 1")
    a("s_waitcnt lgkmcnt(0)")
    st(a, o, 1)
    a("s_load_dword s56, s[14:15], 0")
    a("s_add_u32 s12, s12, s63")
    a("s_addc_u32 s13, s13, 0")
    a("s_load_dwordx8 s[24:31], s[12:13], 0")
    a("s_load_dwordx8 s[48:55], s[12:13], 32")
    a("s_mov_b32 s36, s20")
    a("s_mov_b32 s37, s21")
    a("s_mov_b32 s44, s16")
    a("s_mov_b32 s45, s17")
    a("s_mov_b32 s96, s18")
    a("s_mov_b32 s97, s19")
    a("s_cmp_eq_u32 s23, 0")
    a("s_cbranch_scc0 L_nolead")
    for r in range(4):
        a(f"v_mov_b32 v{Z+r}, -1")
    a(f"v_lshlrev_b32 v{FA}, 4, v{LANE}")
    if o["ctl"]:
        a("s_or_b32 s94, s86, 1")
        a(f"v_mov_b32 v{FV}, s94")
    else:
        a(f"v_mov_b32 v{FV}, 1")
    a("s_setprio 3")
    for k in range(4):
        a(f"buffer_store_dwordx4 {vr(Z,4)}, v{FA}, s[36:39], s93 offen offset:{1024*k} sc1")
    a("s_waitcnt vmcnt(0)")
    a("s_mov_b64 exec, 1")
    a(f"buffer_store_dword v{FV}, v{Z0}, s[96:99], s100 offen sc1")
    a("s_mov_b64 exec, -1")
    a("s_setprio 0")
    a("L_nolead:")
    a("s_waitcnt lgkmcnt(0)")
    for i in range(16):
        a(f"v_writelane_b32 v{X0}, s{24+i if i < 8 else 40+i}, {i}")
    a(f"v_and_b32 v{X1}, 0x3c, v{VTA}")
    a(f"ds_bpermute_b32 v{vt}, v{X1}, v{X0}")
    a(f"v_and_b32 v{X1}, 2, v{VTA}")
    a(f"v_lshlrev_b32 v{X1}, 3, v{X1}")
    a("s_lshr_b32 s56, s56, s62")
    a("s_lshl_b32 s56, s56, 16")
    a(f"v_sub_f32 v{mk}, 1.0, s56")
    a(f"v_mul_f32 v{mk}, {C_MASK:#x}, v{mk}")
    a("s_lshl_b32 s94, s40, 2")
    a("s_waitcnt lgkmcnt(0)")
    a(f"v_lshrrev_b32 v{vt}, v{X1}, v{vt}")
    a(f"v_lshlrev_b32 v{vt}, 16, v{vt}")
    a(f"v_mov_b32 v{VTA}, s94")
    a("s_mov_b32 s101, 0xfffffffe")

    def ldsspin(off, val, lab, out):
        a(f"{lab}:")
        a("s_sub_u32 s58, s58, 1")
        a(f"s_cbranch_scc1 {out}")
        a(f"s_sleep {o['ldssleep']}")
        a(f"ds_read_b32 v{X0}, v{FLG} offset:{off}")
        a("s_waitcnt lgkmcnt(0)")
        a(f"v_readfirstlane_b32 s94, v{X0}")
        a("s_nop 2")
        a(f"s_cmp_ge_u32 s94, {val}")
        a(f"s_cbranch_scc0 {lab}")

    def dbgword(off):
        a(f"buffer_load_dword v{FV}, v{Z0}, s[96:99], s100 offen offset:{off} sc1")
        a("s_waitcnt vmcnt(0)")
        a(f"v_readfirstlane_b32 s94, v{FV}")
        a("s_nop 2")

    if o["x"] == 4:
        ldsspin(F_PROG, 8, "L_spx", "L_giveup")
        a("v_mov_b32 v24, 1")
        a(f"ds_write_b32 v{FLG}, v24 offset:{F_MODE}")
        a("s_waitcnt lgkmcnt(0)")
        a("s_endpgm")
    if o["ctl"]:
        a(f"v_and_b32 v{FA}, 7, v{LANE}")
        a(f"v_lshlrev_b32 v{FA}, 5, v{FA}")
        a(f"s_sleep {o['leadsleep']}")
        a("L_lead:")
        a("s_sub_u32 s58, s58, 1")
        a("s_cbranch_scc1 L_giveup")
        a(f"s_sleep {o['leadsleep2']}")
        a("s_setprio 3")
        a(f"buffer_load_dword v{FV}, v{FA}, s[96:99], 0 offen sc1")
        a("s_waitcnt vmcnt(0)")
        a("s_setprio 0")
        a(f"v_cmp_eq_u32 vcc, 0, v{FV}")
        a("s_cbranch_vccnz L_lead")
        a(f"v_subrev_u32 v{FV}, s86, v{FV}")
        a("s_nop 1")
        if o["t0mean"]:
            xlane_sum_all(a, [FV], T, [1, 2, 4], op="v_add_u32")
            a(f"v_ashrrev_i32 v{FV}, 3, v{FV}")
        else:
            xlane_sum_all(a, [FV], T, [1, 2, 4], op="v_min_i32")
        a(f"v_add_u32 v{FV}, s86, v{FV}")
        a(f"v_or_b32 v{FV}, 1, v{FV}")
        a(f"ds_write_b32 v{FLG}, v{FV} offset:{F_T0}")
    else:
        a("L_lead:")
        a("s_sub_u32 s58, s58, 1")
        a("s_cbranch_scc1 L_giveup")
        a(f"s_sleep {o['leadsleep']}")
        a("s_setprio 3")
        dbgword(0)
        a("s_setprio 0")
        a("s_cmp_eq_u32 s94, 0")
        a("s_cbranch_scc1 L_lead")
    if o["x"] == 5:
        a("v_mov_b32 v24, 1")
        a(f"ds_write_b32 v{FLG}, v24 offset:{F_MODE}")
        a("s_waitcnt lgkmcnt(0)")
        a("s_endpgm")
    st(a, o, 2)
    ldsspin(F_ML, 4, "L_sp1", "L_giveup")
    a(f"ds_read_b128 {vr(T,4)}, v{ROW} offset:{LM}")
    a(f"ds_read_b128 {vr(T+4,4)}, v{ROW} offset:{LL}")
    a(f"ds_read_b32 v{stv}, v{VTA} offset:{LT}")
    a("s_waitcnt lgkmcnt(0)")
    a(f"v_max3_f32 v{Z}, v{T}, v{T+1}, v{T+2}")
    a(f"v_max_f32 v{Z}, v{T+3}, v{Z}")
    for w in range(4):
        a(f"v_sub_f32 v{T+w}, v{T+w}, v{Z}")
    for w in range(4):
        a(f"v_exp_f32 v{T+w}, v{T+w}")
    a(f"v_mov_b32 v{Z+2}, s57")
    a(f"v_mov_b32 v{Z+3}, 0")
    a(f"ds_write_b128 v{ROW}, {vr(T,4)} offset:{LF}")
    a(f"v_mul_f32 v{Z+1}, v{T}, v{T+4}")
    for w in range(1, 4):
        a(f"v_fmac_f32 v{Z+1}, v{T+w}, v{T+4+w}")
    a(f"v_min_u32 v{Z}, s101, v{Z}")
    a(f"v_min_u32 v{Z+1}, s101, v{Z+1}")
    a("s_setprio 3")
    a("s_mov_b64 exec, 0xff")
    a(f"buffer_store_dwordx4 {vr(Z,4)}, v{MLA}, s[36:39], s93 offen sc1")
    a("s_mov_b64 exec, -1")
    a("s_setprio 0")
    a(f"v_mul_f32 v{stv}, {C_SC:#x}, v{stv}")
    a(f"v_add_f32 v{stv}, v{stv}, v{mk}")
    if o["x"] == 2:
        a("v_mov_b32 v24, 1")
        a(f"ds_write_b32 v{FLG}, v24 offset:{F_MODE}")
        a("s_waitcnt lgkmcnt(0)")
        a("s_endpgm")
    st(a, o, 3)
    ldsspin(F_PROG, 1, "L_sp2", "L_giveup")
    st(a, o, 4)
    a("s_setprio 3")
    a("s_mov_b32 s88, 0")
    a("L_mlpoll:")
    a("s_sub_u32 s58, s58, 1")
    a("s_cbranch_scc1 L_giveup2")
    a(f"buffer_load_dwordx4 {vr(ML,4)}, v{om}, s[36:39], s65 offen sc1")
    a("s_waitcnt vmcnt(0)")
    a(f"v_max3_u32 v{X0}, v{ML}, v{ML+1}, v{ML+2}")
    a(f"v_cmp_eq_u32 vcc, -1, v{X0}")
    a("s_cbranch_vccz L_mlgot")
    a("s_cmp_eq_u32 s88, 0")
    a("s_cbranch_scc0 L_mlpoll")
    a(f"s_sleep {o['mlsleep']}")
    a(f"ds_read_b32 v{X0}, v{FLG} offset:{F_PROG}")
    a("s_waitcnt lgkmcnt(0)")
    a(f"v_readfirstlane_b32 s95, v{X0}")
    a("s_nop 2")
    a("s_cmp_le_u32 s95, 4")
    a("s_cbranch_scc1 L_mlpoll")
    a("s_barrier")
    a("s_mov_b32 s88, 1")
    a("s_branch L_mlpoll")
    a("L_mlgot:")
    a(f"v_cmp_ne_u32 vcc, s57, v{ML+2}")
    a(f"v_max_f32 v{Mx}, v{ML}, v{stv}")
    a("s_nop 0")
    a("s_cmp_eq_u64 vcc, 0")
    a("s_cselect_b32 s56, 1, 0")
    a(f"v_mov_b32 v{X1}, s56")
    a(f"ds_write_b32 v{FLG}, v{X1} offset:{F_MODE}")
    xlane_sum_all(a, [Mx], T, [1, 2, 4, 8, 16], op="v_max_f32")
    a(f"v_sub_f32 v{F+5}, v{ML}, v{Mx}")
    a(f"v_sub_f32 v{F+4}, v{stv}, v{Mx}")
    a(f"v_exp_f32 v{F+5}, v{F+5}")
    a(f"v_exp_f32 v{F+4}, v{F+4}")
    a("s_nop 0")
    a(f"v_mul_f32 v{L}, v{F+5}, v{ML+1}")
    a("s_nop 1")
    xlane_sum_all(a, [L], T, [1, 2, 4, 8, 16])
    a(f"v_add_f32 v{L}, v{L}, v{F+4}")
    a(f"v_rcp_f32 v{L}, v{L}")
    a("s_nop 0")
    a(f"v_mul_f32 v{F+5}, v{F+5}, v{L}")
    a(f"v_mul_f32 v{F+4}, v{F+4}, v{L}")
    for k in range(4):
        a(f"ds_bpermute_b32 v{F+k}, v{BP}, v{F+5} offset:{4*k}")
    a(f"v_mul_f32 v{X0}, v{F+4}, v{vt}")
    for r in range(4):
        a(f"v_mov_b32 v{OB+r}, 0")
    for r in range(4):
        a(f"s_mov_b64 exec, {0xff << (8*r):#x}") if r < 3 else a("s_mov_b32 exec_lo, 0xff000000")
        a(f"v_mov_b32 v{OB+r}, v{X0}")
    a("s_mov_b64 exec, -1")
    a("s_waitcnt lgkmcnt(0)")
    if o["x"] == 3:
        a("s_endpgm")
    st(a, o, 5)
    a("s_cmp_eq_u32 s56, 1")
    a("s_cbranch_scc1 L_poll")
    a("s_cmp_eq_u32 s88, 0")
    a("s_cbranch_scc0 L_postbar")
    a("s_barrier")
    a("s_mov_b32 s88, 1")
    a("L_postbar:")
    ldsspin(F_PB, 4, "L_sp4", "L_fin")
    a(f"v_mov_b32 v{X0}, 1")
    a("s_mov_b64 exec, 1")
    a(f"buffer_atomic_add v{X0}, v{Z0}, s[96:99], s100 offen offset:4 sc1")
    a("s_mov_b64 exec, -1")
    a("L_c2:")
    a("s_sub_u32 s58, s58, 1")
    a("s_cbranch_scc1 L_fin")
    dbgword(4)
    a("s_cmp_ge_u32 s94, 32")
    a("s_cbranch_scc0 L_c2")
    a(f"s_add_u32 s64, s64, {PB_OFF:#x}")

    def finalmath(b, Xb):
        if o["pk"]:
            for k in range(4):
                for r in (0, 2):
                    b(pkfma(O + r, Xb + 4 * k + r, F + k, (OB if k == 0 else O) + r))
        else:
            for r in range(4):
                b(f"v_fma_f32 v{O+r}, v{F}, v{Xb+r}, v{OB+r}")
            for k in range(1, 4):
                for r in range(4):
                    b(f"v_fmac_f32 v{O+r}, v{F+k}, v{Xb+4*k+r}")
        b(f"v_permlane32_swap_b32 v{O}, v{O+1}")
        b(f"v_permlane32_swap_b32 v{O+2}, v{O+3}")
        b(f"v_add_f32 v{O}, v{O}, v{O+1}")
        b(f"v_add_f32 v{O+2}, v{O+2}, v{O+3}")
        b(f"v_permlane16_swap_b32 v{O}, v{O+2}")
        b(f"v_add_f32 v{O}, v{O}, v{O+2}")
        b(f"v_add_f32_dpp v{O}, v{O}, v{O} row_ror:8 row_mask:0xf bank_mask:0xf")
        b(f"v_cvt_pk_bf16_f32 v{O}, v{O}, v{O}")
    if o["incr"]:
        a("L_poll:")
        for k in range(4):
            a(f"s_mov_b64 s[{24+2*k}:{25+2*k}], -1")
        a("L_poll2:")
        a("s_sub_u32 s58, s58, 1")
        a("s_cbranch_scc1 L_giveup2")
        for k in range(4):
            a(f"s_mov_b64 exec, s[{24+2*k}:{25+2*k}]")
            a(f"s_cbranch_execz L_pk{k}")
            a(f"buffer_load_dwordx4 {vr(X+4*k,4)}, v{ox}, s[36:39], s64 offen offset:{128*k} sc1")
            a(f"L_pk{k}:")
        a("s_mov_b64 exec, -1")
        a("s_waitcnt vmcnt(0)")
        b = Asm()
        for k in range(4):
            b(f"v_max3_u32 v{T+k}, v{X+4*k}, v{X+4*k+1}, v{X+4*k+2}")
        for k in range(4):
            b(f"v_max_u32 v{T+k}, v{T+k}, v{X+4*k+3}")
        for k in range(4):
            b(f"v_cmp_eq_u32 s[{24+2*k}:{25+2*k}], -1, v{T+k}")
        c = Asm()
        finalmath(c, X)
        nh = 2 if o["pk"] else 4
        b.lines += c.lines[:nh]
        b("s_or_b64 s[32:33], s[24:25], s[26:27]")
        b("s_or_b64 s[34:35], s[28:29], s[30:31]")
        b("s_or_b64 s[32:33], s[32:33], s[34:35]")
        b("s_cselect_b32 s94, s88, 0")
        b("s_cmp_eq_u32 s94, 1")
        b("s_cbranch_scc1 L_poll3" if o["boff"] else "s_cbranch_scc1 L_poll2")
        b.lines += c.lines[nh:]
        a.lines += hz.fix(b.lines)
        a("s_cmp_eq_u64 s[32:33], 0")
        a("s_cbranch_scc1 L_done")
        a("s_barrier")
        a("s_mov_b32 s88, 1")
        st(a, o, 6)
        a("s_branch L_poll2")
        if o["boff"]:
            a("L_poll3:")
            a("s_bcnt1_i32_b64 s94, s[32:33]")
            a(f"s_cmp_le_u32 s94, {o['boffn']}")
            a("s_cbranch_scc1 L_poll2")
            a(f"s_sleep {o['boff']}")
            a("s_branch L_poll2")
    else:
        def pollld(Xb):
            for k in range(4):
                a(f"buffer_load_dwordx4 {vr(Xb+4*k,4)}, v{ox}, s[36:39], s64 offen offset:{128*k} sc1")
        def pollmath(Xb):
            b = Asm()
            sent_check(b, Xb, 16, X0, X1)
            finalmath(b, Xb)
            a.lines += hz.fix(b.lines)
        a("L_poll:")
        pollld(X)
        a("L_poll2:")
        a("s_sub_u32 s58, s58, 1")
        a("s_cbranch_scc1 L_giveup2")
        pollld(X2)
        a("s_waitcnt vmcnt(4)")
        pollmath(X)
        a("s_cbranch_vccz L_done")
        pollld(X)
        a("s_waitcnt vmcnt(4)")
        pollmath(X2)
        a("s_cbranch_vccz L_done")
        a("s_cmp_eq_u32 s88, 0")
        a("s_cbranch_scc0 L_poll2")
        a("s_waitcnt vmcnt(0)")
        if o["eprio"]:
            a("s_setprio 0")
        a("s_barrier")
        a("s_mov_b32 s88, 1")
        st(a, o, 6)
        a("s_branch L_poll")
    a("L_done:")
    a(f"buffer_store_short v{O}, v{OA}, s[44:47], s66 offen {o['outsc']}")
    a("L_giveup2:")
    a("s_cmp_eq_u32 s88, 0")
    a("s_cbranch_scc0 L_fin")
    a("L_giveup:")
    a("s_barrier")
    a("L_fin:")
    if o["stamp"]:
        st(a, o, 7)
        dump_stamps(a, o, 8, WAVE, nwaves=NW)
    if o["amp"]:
        st(a, o, 7)
        a("s_waitcnt lgkmcnt(0)")
        j = o["amp"]
        a(f"s_sub_u32 s60, s{70+2*j}, s70")
        a(f"s_mul_i32 s60, s60, {o['mult']}")
        a(f"s_add_u32 s60, s60, {o['base']}")
        if not o["amph"]:
            a("s_cmp_ge_u32 s69, 256")
            a("s_cbranch_scc1 L_end")
        a("L_spin:")
        a("s_sleep 2")
        a("s_memrealtime s[88:89]")
        a("s_waitcnt lgkmcnt(0)")
        a("s_sub_u32 s88, s88, s70")
        a("s_cmp_lt_u32 s88, s60")
        a("s_cbranch_scc1 L_spin")
    a("L_end:")
    a("s_endpgm")


def gen9(o):
    a = Asm()
    main = NAME + "_kernel"
    a.lines.append((HEADER + f"; @launch grid=(256,1,1) block=(320,1,1) lds=17408" + DOC).rstrip())
    a('.amdgcn_target "amdgcn-amd-amdhsa--gfx950"')
    a(".text")
    a(f".globl {main}")
    kernel(a, o, main)
    a('.section .rodata,"a"')
    a(".p2align 6")
    kd(a, main, 256)
    return a.text()


DEF = dict(nt="nt", map=1, stamp=0, amp=0, amph=0, mult=0, base=6000, maxspin=1000000, mlsleep=16, ldssleep=4,
           pollat=4, fakexcc=0, w=8, budget=160, outsc="", we=0, wfrac=0, sprint=8, fastmask=0xaa, leadsleep=40, wpat='5', x=0, incr=0, alt=1, boff=0, boffn=24, probe=0, w0=0, ramp='7777777766666666', ctl=1, cp0=24, cpstep=4, c0=45, slope=137, wb=8, leadsleep2=16, dith=0, dn=2, t0mean=1, pk=1, probes='', ta=0, tb=0, tw=7, vtouch=0, vpat='', clrat=57, clrsc='', eprio=0)
if __name__ == "__main__":
    o = dict(DEF)
    for kv in sys.argv[2:]:
        k, v = kv.split("=")
        assert k in o, k
        o[k] = int(v, 0) if v.lstrip("-").replace("0x", "").isalnum() and v.lstrip("-")[0].isdigit() else v.replace("+", " ")
    open(sys.argv[1], "w").write(gen9(o))
```

```python
import sys
from gen import Asm, vr, srd, HEADER, NAME, C_SC, C_MASK, xlane_sum_all, dump_stamps, kd, ids
from gen4 import sent_check
import hz

NW = 5
DOC = "\n;     In-flight depth is 5 loads per wave, 8 when the wave is behind a common schedule (origin: mean start time of the\n;  hand-offs      : (max,sum) table: cleared to all-ones by the group leader, announced in d_debug, write-through stores,\n;     every word validates itself. Partial rows: if the table shows the whole group on one XCD they go through that L2\n"
PO_BYTES = 8 * 131072
PB_OFF = PO_BYTES
ML_OFF = 2 * PO_BYTES
WS_BYTES = ML_OFF + 8 * 4096
LM, LL, LF, LT, LFLAG = 0x4000, 0x4100, 0x4200, 0x4300, 0x4380
F_ML, F_PROG, F_MODE, F_PB, F_T0 = 0, 4, 8, 12, 16


def st(a, o, idx, force=False):
    if o.get("probes") and not force and idx in (1, 2, 3, 4, 6) and not o.get("_helper"):
        return
    if o["stamp"] or o["amp"]:
        a(f"s_memrealtime s[{70+2*idx}:{71+2*idx}]")


def pkfma(d, x, f, c):
    fp, hi = f & ~1, f & 1
    if c is None:
        return f"v_pk_mul_f32 {vr(d,2)}, {vr(x,2)}, {vr(fp,2)} op_sel:[0,{hi}] op_sel_hi:[1,{hi}]"
    return f"v_pk_fma_f32 {vr(d,2)}, {vr(x,2)}, {vr(fp,2)}, {vr(c,2)} op_sel:[0,{hi},0] op_sel_hi:[1,{hi},1]"


def kernel(a, o, label):
    nt = o["nt"]
    W = o["w"]
    RN = 32
    VK, VV, OADR, M, X0, X1, FROW, MWR, STA, WAVE, LANE, FLG, C1 = range(1, 14)
    Q0 = 16
    ONE = 16
    RING = 24
    S0 = 152
    W0 = S0 + 32
    T0 = 216
    O0, L0 = 216, 248
    KT = 252

    a(".p2align 8")
    a(f".type {label},@function")
    a(f"{label}:")
    a("s_load_dwordx16 s[4:19], s[0:1], 0")
    a("s_load_dwordx2 s[20:21], s[0:1], 64")
    if o["ctl"] or o["amp"]:
        a("s_memrealtime s[86:87]")
    a("s_cmp_ge_u32 s2, 256")
    a("s_cbranch_scc1 L_end")
    a("v_readfirstlane_b32 s69, v0")
    a(f"v_mov_b32 v{FLG}, {LFLAG:#x}")
    a("v_mov_b32 v24, 0")
    a("v_mov_b32 v25, 0")
    a("s_cmp_ge_u32 s69, 256")
    a("s_cbranch_scc0 L_worker")
    a(f"ds_write_b64 v{FLG}, v[24:25]")
    a(f"ds_write_b64 v{FLG}, v[24:25] offset:8")
    if o["ctl"]:
        a(f"ds_write_b64 v{FLG}, v[24:25] offset:16")
    a("s_waitcnt lgkmcnt(0)")
    a("s_barrier")
    a("s_branch L_helper")
    a("L_worker:")
    st(a, o, 0)
    ids(a, o)
    a(f"v_lshrrev_b32 v{WAVE}, 6, v0")
    a(f"v_and_b32 v{LANE}, 63, v0")
    if o["alt"] == 2:
        a(f"v_lshrrev_b32 v{X0}, 7, v0")
        a(f"v_bfe_u32 v{X1}, v0, 6, 1")
        a(f"v_lshlrev_b32 v{X1}, 12, v{X1}")
        a(f"v_lshl_add_u32 v14, v{X0}, 14, v{X1}")
    else:
        a(f"v_lshlrev_b32 v14, 13, v{WAVE}")
    a(f"v_lshl_add_u32 v{VV}, v{LANE}, 4, v14")
    a(f"v_bfe_u32 v{X0}, v0, 4, 2")
    a(f"v_and_b32 v{X1}, 3, v0")
    a(f"v_lshlrev_b32 v{M}, 4, v{X1}")
    a(f"v_lshl_add_u32 v{M}, v{X0}, 6, v{M}")
    a(f"v_bfe_u32 v{X1}, v0, 2, 2")
    a(f"v_lshl_add_u32 v{VK}, v{X1}, 8, v{M}")
    a(f"v_add_u32 v{VK}, v14, v{VK}")
    a(f"v_and_b32 v{X1}, 7, v0")
    a(f"v_lshlrev_b32 v{STA}, 4, v{X1}")
    a(f"v_lshlrev_b32 v{X1}, 8, v{X1}")
    a(f"v_lshl_add_u32 v{X1}, v{X0}, 6, v{X1}")
    a(f"v_bfe_u32 v{X0}, v0, 3, 1")
    a(f"v_lshl_add_u32 v{X1}, v{X0}, 4, v{X1}")
    a(f"v_lshrrev_b32 v{X0}, 3, v0")
    a(f"v_lshl_add_u32 v{STA}, v{X0}, 12, v{STA}")
    if o["alt"] == 1:
        a(f"v_xor_b32 v14, 0x2000, v{VK}")
        a(f"v_xor_b32 v15, 0x2000, v{VV}")
    a("s_lshl_b32 s3, s22, 23")
    a("s_lshl_b32 s40, s23, 18")
    a("s_add_u32 s3, s3, s40")
    a("s_lshl_b32 s41, s22, 11")
    a("s_mov_b32 s26, 0x40000")
    a("s_mov_b32 s27, 0x20000")
    a("s_mov_b32 s34, 0x4000")
    a("s_mov_b32 s35, 0x20000")
    a(f"s_movk_i32 s91, {0x2000 if o['alt'] == 2 else 0x1000:#x}")
    a("s_waitcnt lgkmcnt(0)")
    st(a, o, 1)
    a("s_add_u32 s24, s6, s3")
    a("s_addc_u32 s25, s7, 0")

    def load(n):
        strm, t, i = n >> 6, (n >> 3) & 7, n & 7
        buf = RING + 4 * (n % RN)
        voff, sb = (VK, 24) if strm == 0 else (VV, 28)
        hi = 8192 if o["alt"] == 2 else 4096
        if o["alt"] == 1 and (t & 1):
            voff = 14 + strm
        if t == 0:
            so = "0" if i < 4 else "s91"
        else:
            if i % 4 == 0:
                a(f"s_mov_b32 s90, {t*32768 + (i>>2)*hi:#x}")
            so = "s90"
        a(f"buffer_load_dwordx4 {vr(buf,4)}, v{voff}, s[{sb}:{sb+3}], {so} offen offset:{(i&3)*1024} {nt}")

    load(0)
    a("s_mov_b32 s32, s4")
    a("s_mov_b32 s33, s5")
    a(f"buffer_load_dwordx4 {vr(Q0,4)}, v{X1}, s[32:35], s41 offen")
    a(f"buffer_load_dwordx4 {vr(Q0+4,4)}, v{X1}, s[32:35], s41 offen offset:32")
    W0N = o["w0"] or W
    for n in range(1, W0N):
        load(n)
    if not o["probe"]:
        st(a, o, 2)
    a("s_mov_b32 s36, s20")
    a("s_mov_b32 s37, s21")
    a(f"s_mov_b32 s38, {WS_BYTES:#x}")
    a("s_mov_b32 s39, 0x20000")
    a("s_lshl_b32 s92, s22, 17")
    a("s_lshl_b32 s95, s23, 7")
    a("s_add_u32 s92, s92, s95")
    if not o["clrat"]:
        for r in range(4):
            a(f"v_mov_b32 v{L0+r}, -1")
        a(f"buffer_store_dwordx4 {vr(L0,4)}, v{STA}, s[36:39], s92 offen")
    a("s_cmp_eq_u32 s69, 64")
    a("s_cbranch_scc0 L_side_done")
    srd(a, 48, 10, 2048)
    a("s_lshl_b32 s61, s22, 8")
    a(f"buffer_load_dwordx4 {vr(KT,4)}, v{M}, s[48:51], s61 offen")
    a("L_side_done:")
    a("s_add_u32 s28, s8, s3")
    a("s_addc_u32 s29, s9, 0")
    a("s_mov_b32 s30, 0x40000")
    a("s_mov_b32 s31, 0x20000")
    a("s_mov_b32 s101, 0xfffffffe")
    a(f"s_mov_b32 s68, {C_SC:#x}")
    a("s_mov_b32 s42, 0x05040100")
    a("s_mov_b32 s43, 0x07060302")
    if o["we"]:
        a("s_getreg_b32 s57, hwreg(HW_REG_XCC_ID, 0, 3)")
        a(f"s_lshr_b32 s57, {o['fastmask']:#x}, s57")
        a("s_and_b32 vcc_lo, s57, 1")
        a("s_mov_b32 vcc_hi, 0")
    a(f"v_mov_b32 v{C1}, 1")
    a(f"v_and_b32 v{MWR}, 15, v0")
    a(f"v_lshlrev_b32 v{MWR}, 4, v{MWR}")
    a(f"v_lshl_add_u32 v{MWR}, v{WAVE}, 2, v{MWR}")
    a(f"v_lshrrev_b32 v{FROW}, 5, v0")
    a(f"v_lshlrev_b32 v{FROW}, 4, v{FROW}")
    a(f"v_and_b32 v{OADR}, 7, v0")
    a(f"v_mul_u32_u24 v{OADR}, 528, v{OADR}")
    a(f"v_lshl_add_u32 v{OADR}, v{WAVE}, 12, v{OADR}")
    a(f"v_bfe_u32 v{X0}, v0, 4, 2")
    a(f"v_lshl_add_u32 v{OADR}, v{X0}, 7, v{OADR}")
    a(f"v_and_b32 v{X0}, 8, v0")
    a(f"v_lshlrev_b32 v{X0}, 3, v{X0}")
    a(f"v_xor_b32 v{OADR}, v{X0}, v{OADR}")

    a("s_barrier")
    items = []
    def item(lines, need=-1, cost=None, frees=None):
        if isinstance(lines, str):
            lines = [lines]
        if cost is None:
            cost = sum(10 if l.startswith("v_mfma") else 8 if l.startswith("v_exp") else 4 for l in lines)
        items.append((lines, cost, need, frees))
    def sub(fn, *args, **kw):
        b = Asm()
        fn(b, *args, **kw)
        return [l.strip() for l in b.lines]
    def flagl(off):
        return ["s_mov_b64 exec, 1", f"ds_add_u32 v{FLG}, v{C1} offset:{off}", "s_mov_b64 exec, -1"]
    def KB(j):
        return RING + 4 * (j % RN)
    for j in range(64 + 5):
        need = max(min(j, 63), 1)
        if j < 64:
            i = j % 8
            item(f"v_mfma_f32_16x16x32_bf16 {vr(T0+4*i+2,4)}, {vr(KB(j),4)}, {vr(Q0,4)}, 0", need)
        if 0 <= j - 2 < 64:
            i = (j - 2) % 8
            item(f"v_mfma_f32_16x16x32_bf16 {vr(T0+4*i,4)}, {vr(KB(j-2),4)}, {vr(Q0+4,4)}, {vr(T0+4*i,4)}", need, frees=j - 2)
        jj = j - 5
        if 0 <= jj < 64:
            i = jj % 8
            item(f"v_add_f32_dpp v{S0+jj}, v{T0+4*i+3}, v{T0+4*i+2} row_ror:8 row_mask:0xf bank_mask:0xf", need)
            if jj == 1:
                item(f"v_max_f32 v{M}, v{S0}, v{S0+1}", need)
            elif jj % 2 == 1:
                item(f"v_max3_f32 v{M}, v{S0+jj-1}, v{S0+jj}, v{M}", need)
        if j == W0N + 2:
            item(["s_cmp_eq_u32 s69, 64", "s_cbranch_scc0 L_notree", ";SKIP_BEGIN",
                  f"v_mfma_f32_16x16x32_bf16 {vr(W0+2,4)}, {vr(KT,4)}, {vr(Q0,4)}, 0",
                  f"v_mfma_f32_16x16x32_bf16 {vr(W0,4)}, {vr(KT,4)}, {vr(Q0+4,4)}, {vr(W0,4)}",
                  f"v_and_b32 v{X0}, 15, v0", f"v_lshlrev_b32 v{X0}, 2, v{X0}",
                  f"v_add_f32_dpp v{X1}, v{W0+3}, v{W0+2} row_ror:8 row_mask:0xf bank_mask:0xf",
                  f"ds_write_b32 v{X0}, v{X1} offset:{LT}", ";SKIP_END", "L_notree:"], need, cost=10)
    if o["stamp"] or o["amp"]:
        item(sub(st, o, 3), 63)
    xl = [l for l in sub(xlane_sum_all, [M], X0, [16, 32], op="v_max_f32") if not l.startswith("s_nop")]
    item(xl, 63)
    item([f"v_mov_b32 v{ONE+r}, 0x3f803f80" for r in range(4)] + [f"v_mul_f32 v{M}, s68, v{M}",
          f"ds_write_b32 v{MWR}, v{M} offset:{LM}"], 63)
    for t in range(8):
        for i in range(8):
            item(f"v_fma_f32 v{S0+8*t+i}, v{S0+8*t+i}, s68, -v{M}", 63)
        for i in range(8):
            item(f"v_exp_f32 v{S0+8*t+i}, v{S0+8*t+i}", 63)
        if t > 0:
            for k in range(4 * t - 4, 4 * t):
                item(f"v_cvt_pk_bf16_f32 v{S0+k}, v{S0+2*k}, v{S0+2*k+1}", 63)
        if t > 1:
            c = "0" if t == 2 else vr(L0, 4)
            item(f"v_mfma_f32_16x16x32_bf16 {vr(L0,4)}, {vr(ONE,4)}, {vr(S0+4*(t-2),4)}, {c}", 63)
    for k in range(28, 32):
        item(f"v_cvt_pk_bf16_f32 v{S0+k}, v{S0+2*k}, v{S0+2*k+1}", 63)
    item(f"v_mfma_f32_16x16x32_bf16 {vr(L0,4)}, {vr(ONE,4)}, {vr(S0+24,4)}, {vr(L0,4)}", 63)
    item(f"v_mfma_f32_16x16x32_bf16 {vr(L0,4)}, {vr(ONE,4)}, {vr(S0+28,4)}, {vr(L0,4)}", 63)
    item([f"v_lshlrev_b32 v{X1}, 4, v0", f"ds_write_b32 v{MWR}, v{L0} offset:{LL}"] + flagl(F_ML), 63, cost=60)
    if o["stamp"] or o["amp"]:
        item(sub(st, o, 4), 63)
    for t in range(8):
        if t == o["pollat"] or (t == 7 and o["late"] <= 0) or (t == 6 and o["late"] == -9):
            item(flagl(F_PROG), 63 + 8 * t)
        def mf(j):
            c = "0" if t == 0 else vr(O0 + 4 * j, 4)
            return f"v_mfma_f32_16x16x32_bf16 {vr(O0+4*j,4)}, {vr(W0+4*j,4)}, {vr(S0+4*t,4)}, {c}"
        for m in range(4):
            n0 = 64 + 8 * t + 2 * m
            pm = {}
            for u in range(4):
                for half in range(2):
                    j = 2 * u + half
                    pm[j] = f"v_perm_b32 v{W0+4*j+m}, v{KB(n0+1)+u}, v{KB(n0)+u}, s{42+half}"
            if t == 7 and m == 3:
                order = [0, 4, 1, 5, 2, 6, 3, 7]
                ls = [pm[order[0]], pm[order[1]], pm[order[2]]]
                for x in range(8):
                    ls.append(mf(order[x]))
                    if x + 3 < 8:
                        ls.append(pm[order[x + 3]])
                item(ls, n0 + 1, frees=n0 + 1)
            else:
                item([pm[j] for j in range(8)], n0 + 1, frees=n0 + 1)
            if t == 7 and o["late"] == m + 1:
                item(flagl(F_PROG), n0 + 1)
        if t < 7:
            for j in range(8):
                item(mf(j), 64 + 8 * t + 7, cost=16)
        if t == 5:
            item([f"v_xor_b32 v{S0+j}, {j<<4}, v{OADR}" for j in range(1, 4)], 64 + 8 * t + 7)
    def dith(n):
        k = (n - o["cp0"]) // o["cpstep"]
        seq = {1: [0], 2: [-1, 1], 3: [-1, 1, 0], 4: [-1, 1 / 3, 1, -1 / 3]}[o["dn"]]
        return o["dith"] * seq[k % len(seq)]
    start = len(a.lines)
    q = 0
    freed = -1
    avail = -1
    for n in range(W0N, 128):
        assert n - RN <= freed, (n, freed)
        we = o["we"]
        if we and n < 128 - o["sprint"] and (o["wfrac"] == 0 or n % o["wfrac"] != 0):
            a(f"s_cbranch_vccnz L_th{n}")
            a(f"s_waitcnt vmcnt({we-1})")
            a(f"L_th{n}:")
        wn = W
        if o["ctl"] and o["cp0"] <= n < 128 - o["sprint"]:
            if (n - o["cp0"]) % o["cpstep"] == 0:
                a("s_waitcnt lgkmcnt(0)")
                a(f"v_readfirstlane_b32 s60, v{KT}")
                a("s_nop 1")
                a("s_sub_u32 s61, s62, s60")
                a("s_cmp_lg_u32 s60, 0")
                a("s_cselect_b32 s61, s61, 0")
                a(f"s_cmp_gt_u32 s61, {int(round(o['c0'] + n * o['slope'] / 10.0 + dith(n)))}")
                a("s_cselect_b64 vcc, -1, 0")
                if o["far"]:
                    a("s_sub_u32 s61, s61, 1")
                    a(f"s_cmp_lt_u32 s61, {max(int(round(o['c0'] + n * o['slope'] / 10.0 - o['far'])), 0)}")
                    a("s_cselect_b32 s59, 1, 0")
            wlow = int(str(o['wpat'])[0])
            if o["ta"] <= n < o["tb"]:
                wlow = o["tw"]
            if n >= 64 and o["vpat"] != "":
                wlow = max(wlow, int(str(o["vpat"])[n % len(str(o["vpat"]))]))
            if wlow < o["wb"]:
                a(f"s_cbranch_vccnz L_th{n}")
                a(";SKIP_BEGIN")
                a(f"s_waitcnt vmcnt({wlow-1})")
                if o["far"] and n % o["farn"] == 0:
                    a("s_cmp_eq_u32 s59, 0")
                    a(f"s_cbranch_scc1 L_th{n}")
                    a(f"s_waitcnt vmcnt({wlow-2})")
                a(";SKIP_END")
                a(f"L_th{n}:")
            wn = o["wb"]
        elif o["wpat"] != "" and n < 128 - o["sprint"]:
            pat = str(o["wpat"])
            wn = int(pat[n % len(pat)])
            if o["ramp"] != "" and n - W0N < len(str(o["ramp"])):
                wn = int(str(o["ramp"])[n - W0N])
        a(f"s_waitcnt vmcnt({wn-1})")
        if n == o["probe"]:
            st(a, o, 2)
        if o["probes"]:
            pl = [int(x) for x in str(o["probes"]).split("_")]
            if n in pl:
                st(a, o, [1, 2, 3, 4, 6][pl.index(n)], force=True)
        load(n)
        if o["ctl"] and o["cp0"] <= n + 1 < 128 - o["sprint"] and (n + 1 - o["cp0"]) % o["cpstep"] == 0:
            a("s_memrealtime s[62:63]")
            a(f"ds_read_b32 v{KT}, v{FLG} offset:{F_T0}")
        if n == o["clr2at"]:
            for r in range(4):
                a(f"v_mov_b32 v{KT+r}, -1")
            a(f"buffer_store_dwordx4 {vr(KT,4)}, v{STA}, s[36:39], s92 offen")
        if n == o["clrat"]:
            for r in range(4):
                a(f"v_mov_b32 v{KT+r}, -1")
            a(f"buffer_store_dwordx4 {vr(KT,4)}, v{STA}, s[36:39], s92 offen {o['clrsc']}")
        if n == o["vtouch"]:
            a("s_mov_b64 exec, 1")
            a(f"buffer_load_dword v{KT+1}, v{VV}, s[28:31], 0 offen")
            a("s_mov_b64 exec, -1")
        avail = max(avail, n - wn)
        budget = o["budget"]
        while q < len(items) and items[q][2] <= avail and budget > 0:
            for l in items[q][0]:
                a(l)
            budget -= items[q][1]
            if items[q][3] is not None:
                freed = items[q][3]
            q += 1
    while q < len(items):
        if items[q][2] > avail:
            avail = items[q][2]
            a(f"s_waitcnt vmcnt({127-avail})")
        for l in items[q][0]:
            a(l)
        q += 1
    st(a, o, 5)
    for j in range(4):
        for r in range(4):
            a(f"v_mov_b32_dpp v{O0+4*j+r}, v{O0+4*(j+4)+r} row_shr:8 row_mask:0xf bank_mask:0xc")
        a(f"ds_write_b128 v{OADR if j == 0 else S0+j}, {vr(O0+4*j,4)}")
    a.lines[start:] = hz.fix(a.lines[start:])
    a("s_waitcnt lgkmcnt(0)")
    a("s_barrier")
    OR, FR = RING, RING + 16
    a(f"ds_read_b128 {vr(FR,4)}, v{FROW} offset:{LF}")
    for w in range(4):
        a(f"ds_read_b128 {vr(OR+4*w,4)}, v{X1} offset:{4096*w}")
    a(f"ds_read_b32 v{X0}, v{FLG} offset:{F_MODE}")
    fine = not (o["stamp"] or o["amp"])
    for w in range(4):
        a(f"s_waitcnt lgkmcnt({4-w})" if fine else "s_waitcnt lgkmcnt(0)")
        if o["pk"]:
            for r in (0, 2):
                a(pkfma(OR + r, OR + 4 * w + r, FR + w, None if w == 0 else OR + r))
        else:
            for r in range(4):
                if w == 0:
                    a(f"v_mul_f32 v{OR+r}, v{FR}, v{OR+r}")
                else:
                    a(f"v_fmac_f32 v{OR+r}, v{FR+w}, v{OR+4*w+r}")
    for r in range(4):
        a(f"v_min_u32 v{OR+r}, s101, v{OR+r}")
    a(f"buffer_store_dwordx4 {vr(OR,4)}, v{STA}, s[36:39], s92 offen {o['asc']}")
    st(a, o, 6)
    a("s_waitcnt lgkmcnt(0)")
    a(f"v_readfirstlane_b32 s94, v{X0}")
    a(f"s_add_u32 s92, s92, {PB_OFF:#x}")
    a("s_nop 1")
    a("s_cmp_eq_u32 s94, 1")
    a("s_cbranch_scc1 L_fin")
    a(f"buffer_store_dwordx4 {vr(OR,4)}, v{STA}, s[36:39], s92 offen sc1")
    a("s_waitcnt vmcnt(0)")
    for l in flagl(F_PB):
        a(l)
    a("s_branch L_fin")

    a("L_helper:")
    o["_helper"] = 1
    if o["x"] == 1:
        a("v_mov_b32 v24, 1")
        a(f"ds_write_b32 v{FLG}, v24 offset:{F_MODE}")
        a("s_waitcnt lgkmcnt(0)")
        a("s_endpgm")
    B = RING
    mk, stv, vt, om, Z0, OA, ox, Mx, L, FV, ROW, FA = (B + i for i in range(2, 14))
    X, ML, F, O, T, Z, OB, MLA, VTA, BP, X2 = B + 16, B + 32, B + 36, B + 44, B + 48, B + 56, B + 60, B + 64, B + 65, B + 66, B + 72
    if o["amp"]:
        a("s_mov_b64 s[70:71], s[86:87]")
    else:
        st(a, o, 0)
    ids(a, o)
    a(f"v_lshrrev_b32 v{WAVE}, 6, v0")
    a(f"v_and_b32 v{LANE}, 63, v0")
    a("s_lshr_b32 s40, s23, 2")
    a("s_and_b32 s41, s23, 3")
    a("s_lshl_b32 s100, s22, 5")
    a("s_lshl_b32 s65, s22, 12")
    a(f"s_add_u32 s65, s65, {ML_OFF:#x}")
    a("s_lshl_b32 s95, s23, 7")
    a("s_add_u32 s93, s65, s95")
    a("s_lshl_b32 s95, s40, 4")
    a("s_add_u32 s65, s65, s95")
    a("s_lshl_b32 s60, s22, 3")
    a("s_add_u32 s60, s60, s40")
    a("s_lshl_b32 s60, s60, 8")
    a("s_lshl_b32 s61, s22, 8")
    a("s_lshl_b32 s67, s41, 6")
    a("s_add_u32 s63, s61, s67")
    a("s_add_u32 s66, s60, s67")
    a("s_lshl_b32 s64, s22, 17")
    a("s_lshl_b32 s67, s23, 12")
    a("s_add_u32 s64, s64, s67")
    a("s_lshr_b32 s62, s22, 2")
    a("s_lshl_b32 s62, s62, 4")
    for d, n in ((36, WS_BYTES), (44, 0x4000), (96, 256)):
        a(f"s_mov_b32 s{d+2}, {n:#x}")
        a(f"s_mov_b32 s{d+3}, 0x20000")
    a(f"v_mov_b32 v{Z0}, 0")
    a(f"v_and_b32 v{X0}, 7, v{LANE}")
    a(f"v_lshlrev_b32 v{MLA}, 4, v{X0}")
    a(f"v_xor_b32 v{OA}, s40, v{X0}")
    a(f"v_lshlrev_b32 v{OA}, 1, v{OA}")
    a(f"v_bfe_u32 v{X1}, v{LANE}, 3, 2")
    a(f"v_lshl_add_u32 v{VTA}, v{X1}, 4, v{OA}")
    a(f"v_bfe_u32 v{X1}, v{LANE}, 4, 1")
    a(f"v_lshl_add_u32 v{OA}, v{X1}, 5, v{OA}")
    a(f"v_bfe_u32 v{X1}, v{LANE}, 5, 1")
    a(f"v_lshl_add_u32 v{OA}, v{X1}, 4, v{OA}")
    a(f"v_lshrrev_b32 v{X1}, 3, v{LANE}")
    a(f"v_lshlrev_b32 v{ox}, 9, v{X1}")
    a(f"v_lshl_add_u32 v{ox}, v{X0}, 4, v{ox}")
    a(f"v_lshlrev_b32 v{BP}, 4, v{X1}")
    a(f"v_and_b32 v{om}, 31, v{LANE}")
    a(f"v_lshlrev_b32 v{om}, 7, v{om}")
    a(f"v_and_b32 v{ROW}, 15, v{LANE}")
    a(f"v_lshlrev_b32 v{ROW}, 4, v{ROW}")
    a(f"s_mov_b32 s58, {o['maxspin']}")
    a("s_getreg_b32 s57, hwreg(HW_REG_XCC_ID, 0, 4)")
    if o["fakexcc"]:
        a("s_lshr_b32 s57, s2, 3")
        a("s_and_b32 s57, s57, 1")
    a("s_waitcnt lgkmcnt(0)")
    st(a, o, 1)
    a("s_load_dword s56, s[14:15], 0")
    a("s_add_u32 s12, s12, s63")
    a("s_addc_u32 s13, s13, 0")
    a("s_load_dwordx8 s[24:31], s[12:13], 0")
    a("s_load_dwordx8 s[48:55], s[12:13], 32")
    a("s_mov_b32 s36, s20")
    a("s_mov_b32 s37, s21")
    a("s_mov_b32 s44, s16")
    a("s_mov_b32 s45, s17")
    a("s_mov_b32 s96, s18")
    a("s_mov_b32 s97, s19")
    a("s_cmp_eq_u32 s23, 0")
    a("s_cbranch_scc0 L_nolead")
    for r in range(4):
        a(f"v_mov_b32 v{Z+r}, -1")
    a(f"v_lshlrev_b32 v{FA}, 4, v{LANE}")
    if o["ctl"]:
        a("s_or_b32 s94, s86, 1")
        a(f"v_mov_b32 v{FV}, s94")
    else:
        a(f"v_mov_b32 v{FV}, 1")
    a("s_setprio 3")
    for k in range(4):
        a(f"buffer_store_dwordx4 {vr(Z,4)}, v{FA}, s[36:39], s93 offen offset:{1024*k} sc1")
    a("s_waitcnt vmcnt(0)")
    a("s_mov_b64 exec, 1")
    a(f"buffer_store_dword v{FV}, v{Z0}, s[96:99], s100 offen sc1")
    a("s_mov_b64 exec, -1")
    a("s_setprio 0")
    a("L_nolead:")
    a("s_waitcnt lgkmcnt(0)")
    for i in range(16):
        a(f"v_writelane_b32 v{X0}, s{24+i if i < 8 else 40+i}, {i}")
    a(f"v_and_b32 v{X1}, 0x3c, v{VTA}")
    a(f"ds_bpermute_b32 v{vt}, v{X1}, v{X0}")
    a(f"v_and_b32 v{X1}, 2, v{VTA}")
    a(f"v_lshlrev_b32 v{X1}, 3, v{X1}")
    a("s_lshr_b32 s56, s56, s62")
    a("s_lshl_b32 s56, s56, 16")
    a(f"v_sub_f32 v{mk}, 1.0, s56")
    a(f"v_mul_f32 v{mk}, {C_MASK:#x}, v{mk}")
    a("s_lshl_b32 s94, s40, 2")
    a("s_waitcnt lgkmcnt(0)")
    a(f"v_lshrrev_b32 v{vt}, v{X1}, v{vt}")
    a(f"v_lshlrev_b32 v{vt}, 16, v{vt}")
    a(f"v_mov_b32 v{VTA}, s94")
    a("s_mov_b32 s101, 0xfffffffe")

    def ldsspin(off, val, lab, out, sleep=None):
        a(f"{lab}:")
        a("s_sub_u32 s58, s58, 1")
        a(f"s_cbranch_scc1 {out}")
        a(f"s_sleep {o['ldssleep'] if sleep is None else sleep}")
        a(f"ds_read_b32 v{X0}, v{FLG} offset:{off}")
        a("s_waitcnt lgkmcnt(0)")
        a(f"v_readfirstlane_b32 s94, v{X0}")
        a("s_nop 2")
        a(f"s_cmp_ge_u32 s94, {val}")
        a(f"s_cbranch_scc0 {lab}")

    def dbgword(off):
        a(f"buffer_load_dword v{FV}, v{Z0}, s[96:99], s100 offen offset:{off} sc1")
        a("s_waitcnt vmcnt(0)")
        a(f"v_readfirstlane_b32 s94, v{FV}")
        a("s_nop 2")

    if o["x"] == 4:
        ldsspin(F_PROG, 8, "L_spx", "L_giveup")
        a("v_mov_b32 v24, 1")
        a(f"ds_write_b32 v{FLG}, v24 offset:{F_MODE}")
        a("s_waitcnt lgkmcnt(0)")
        a("s_endpgm")
    if o["ctl"]:
        a(f"v_and_b32 v{FA}, 7, v{LANE}")
        a(f"v_lshlrev_b32 v{FA}, 5, v{FA}")
        a(f"s_sleep {o['leadsleep']}")
        a("L_lead:")
        a("s_sub_u32 s58, s58, 1")
        a("s_cbranch_scc1 L_giveup")
        a(f"s_sleep {o['leadsleep2']}")
        a("s_setprio 3")
        a(f"buffer_load_dword v{FV}, v{FA}, s[96:99], 0 offen sc1")
        a("s_waitcnt vmcnt(0)")
        a("s_setprio 0")
        a(f"v_cmp_eq_u32 vcc, 0, v{FV}")
        a("s_cbranch_vccnz L_lead")
        a(f"v_subrev_u32 v{FV}, s86, v{FV}")
        a("s_nop 1")
        if o["t0mean"]:
            xlane_sum_all(a, [FV], T, [1, 2, 4], op="v_add_u32")
            a(f"v_ashrrev_i32 v{FV}, 3, v{FV}")
        else:
            xlane_sum_all(a, [FV], T, [1, 2, 4], op="v_min_i32")
        a(f"v_add_u32 v{FV}, s86, v{FV}")
        a(f"v_or_b32 v{FV}, 1, v{FV}")
        a(f"ds_write_b32 v{FLG}, v{FV} offset:{F_T0}")
    else:
        a("L_lead:")
        a("s_sub_u32 s58, s58, 1")
        a("s_cbranch_scc1 L_giveup")
        a(f"s_sleep {o['leadsleep']}")
        a("s_setprio 3")
        dbgword(0)
        a("s_setprio 0")
        a("s_cmp_eq_u32 s94, 0")
        a("s_cbranch_scc1 L_lead")
    if o["x"] == 5:
        a("v_mov_b32 v24, 1")
        a(f"ds_write_b32 v{FLG}, v24 offset:{F_MODE}")
        a("s_waitcnt lgkmcnt(0)")
        a("s_endpgm")
    st(a, o, 2)
    ldsspin(F_ML, 4, "L_sp1", "L_giveup")
    a(f"ds_read_b128 {vr(T,4)}, v{ROW} offset:{LM}")
    a(f"ds_read_b128 {vr(T+4,4)}, v{ROW} offset:{LL}")
    a(f"ds_read_b32 v{stv}, v{VTA} offset:{LT}")
    a("s_waitcnt lgkmcnt(0)")
    a(f"v_max3_f32 v{Z}, v{T}, v{T+1}, v{T+2}")
    a(f"v_max_f32 v{Z}, v{T+3}, v{Z}")
    for w in range(4):
        a(f"v_sub_f32 v{T+w}, v{T+w}, v{Z}")
    for w in range(4):
        a(f"v_exp_f32 v{T+w}, v{T+w}")
    a(f"v_mov_b32 v{Z+2}, s57")
    a(f"v_mov_b32 v{Z+3}, 0")
    a(f"ds_write_b128 v{ROW}, {vr(T,4)} offset:{LF}")
    a(f"v_mul_f32 v{Z+1}, v{T}, v{T+4}")
    for w in range(1, 4):
        a(f"v_fmac_f32 v{Z+1}, v{T+w}, v{T+4+w}")
    a(f"v_min_u32 v{Z}, s101, v{Z}")
    a(f"v_min_u32 v{Z+1}, s101, v{Z+1}")
    a("s_setprio 3")
    a("s_mov_b64 exec, 0xff")
    a(f"buffer_store_dwordx4 {vr(Z,4)}, v{MLA}, s[36:39], s93 offen sc1")
    a("s_mov_b64 exec, -1")
    a("s_setprio 0")
    a(f"v_mul_f32 v{stv}, {C_SC:#x}, v{stv}")
    a(f"v_add_f32 v{stv}, v{stv}, v{mk}")
    if o["x"] == 2:
        a("v_mov_b32 v24, 1")
        a(f"ds_write_b32 v{FLG}, v24 offset:{F_MODE}")
        a("s_waitcnt lgkmcnt(0)")
        a("s_endpgm")
    st(a, o, 3)
    ldsspin(F_PROG, 1, "L_sp2", "L_giveup")
    st(a, o, 4)
    a("s_setprio 3")
    a("s_mov_b32 s88, 0")
    a("L_mlpoll:")
    a("s_sub_u32 s58, s58, 1")
    a("s_cbranch_scc1 L_giveup2")
    a(f"buffer_load_dwordx4 {vr(ML,4)}, v{om}, s[36:39], s65 offen sc1")
    a("s_waitcnt vmcnt(0)")
    a(f"v_max3_u32 v{X0}, v{ML}, v{ML+1}, v{ML+2}")
    a(f"v_cmp_eq_u32 vcc, -1, v{X0}")
    a("s_cbranch_vccz L_mlgot")
    a("s_cmp_eq_u32 s88, 0")
    a("s_cbranch_scc0 L_mlpoll")
    a(f"s_sleep {o['mlsleep']}")
    a(f"ds_read_b32 v{X0}, v{FLG} offset:{F_PROG}")
    a("s_waitcnt lgkmcnt(0)")
    a(f"v_readfirstlane_b32 s95, v{X0}")
    a("s_nop 2")
    a("s_cmp_le_u32 s95, 4")
    a("s_cbranch_scc1 L_mlpoll")
    a("s_barrier")
    a("s_mov_b32 s88, 1")
    a("s_branch L_mlpoll")
    a("L_mlgot:")
    a(f"v_cmp_ne_u32 vcc, s57, v{ML+2}")
    a(f"v_max_f32 v{Mx}, v{ML}, v{stv}")
    a("s_nop 0")
    a("s_cmp_eq_u64 vcc, 0")
    a("s_cselect_b32 s56, 1, 0")
    a(f"v_mov_b32 v{X1}, s56")
    a(f"ds_write_b32 v{FLG}, v{X1} offset:{F_MODE}")
    xlane_sum_all(a, [Mx], T, [1, 2, 4, 8, 16], op="v_max_f32")
    a(f"v_sub_f32 v{F+5}, v{ML}, v{Mx}")
    a(f"v_sub_f32 v{F+4}, v{stv}, v{Mx}")
    a(f"v_exp_f32 v{F+5}, v{F+5}")
    a(f"v_exp_f32 v{F+4}, v{F+4}")
    a("s_nop 0")
    a(f"v_mul_f32 v{L}, v{F+5}, v{ML+1}")
    a("s_nop 1")
    xlane_sum_all(a, [L], T, [1, 2, 4, 8, 16])
    a(f"v_add_f32 v{L}, v{L}, v{F+4}")
    a(f"v_rcp_f32 v{L}, v{L}")
    a("s_nop 0")
    a(f"v_mul_f32 v{F+5}, v{F+5}, v{L}")
    a(f"v_mul_f32 v{F+4}, v{F+4}, v{L}")
    for k in range(4):
        a(f"ds_bpermute_b32 v{F+k}, v{BP}, v{F+5} offset:{4*k}")
    a(f"v_mul_f32 v{X0}, v{F+4}, v{vt}")
    for r in range(4):
        a(f"v_mov_b32 v{OB+r}, 0")
    for r in range(4):
        a(f"s_mov_b64 exec, {0xff << (8*r):#x}") if r < 3 else a("s_mov_b32 exec_lo, 0xff000000")
        a(f"v_mov_b32 v{OB+r}, v{X0}")
    a("s_mov_b64 exec, -1")
    a("s_waitcnt lgkmcnt(0)")
    if o["x"] == 3:
        a("s_endpgm")
    st(a, o, 5)
    if o["thin"]:
        a("s_lshr_b32 s94, s23, 2")
        a("s_lshl_b32 s94, s94, 3")
        a("s_lshl_b64 s[94:95], 1, s94")
        a("s_cmp_eq_u32 s88, 0")
        a("s_cselect_b64 s[94:95], s[94:95], -1")
        a("s_cmp_eq_u32 s56, 1")
        a("s_cselect_b64 exec, s[94:95], -1")
    a("s_cmp_eq_u32 s56, 1")
    a("s_cbranch_scc1 L_poll")
    a("s_cmp_eq_u32 s88, 0")
    a("s_cbranch_scc0 L_postbar")
    a("s_barrier")
    a("s_mov_b32 s88, 1")
    a("L_postbar:")
    ldsspin(F_PB, 4, "L_sp4", "L_fin")
    a(f"v_mov_b32 v{X0}, 1")
    a("s_mov_b64 exec, 1")
    a(f"buffer_atomic_add v{X0}, v{Z0}, s[96:99], s100 offen offset:4 sc1")
    a("s_mov_b64 exec, -1")
    a("L_c2:")
    a("s_sub_u32 s58, s58, 1")
    a("s_cbranch_scc1 L_fin")
    dbgword(4)
    a("s_cmp_ge_u32 s94, 32")
    a("s_cbranch_scc0 L_c2")
    a(f"s_add_u32 s64, s64, {PB_OFF:#x}")

    def finalmath(b, Xb):
        if o["pk"]:
            for k in range(4):
                for r in (0, 2):
                    b(pkfma(O + r, Xb + 4 * k + r, F + k, (OB if k == 0 else O) + r))
        else:
            for r in range(4):
                b(f"v_fma_f32 v{O+r}, v{F}, v{Xb+r}, v{OB+r}")
            for k in range(1, 4):
                for r in range(4):
                    b(f"v_fmac_f32 v{O+r}, v{F+k}, v{Xb+4*k+r}")
        b(f"v_permlane32_swap_b32 v{O}, v{O+1}")
        b(f"v_permlane32_swap_b32 v{O+2}, v{O+3}")
        b(f"v_add_f32 v{O}, v{O}, v{O+1}")
        b(f"v_add_f32 v{O+2}, v{O+2}, v{O+3}")
        b(f"v_permlane16_swap_b32 v{O}, v{O+2}")
        b(f"v_add_f32 v{O}, v{O}, v{O+2}")
        b(f"v_add_f32_dpp v{O}, v{O}, v{O} row_ror:8 row_mask:0xf bank_mask:0xf")
        b(f"v_cvt_pk_bf16_f32 v{O}, v{O}, v{O}")
    if o["incr"]:
        a("L_poll:")
        for k in range(4):
            a(f"s_mov_b64 s[{24+2*k}:{25+2*k}], -1")
        a("L_poll2:")
        a("s_sub_u32 s58, s58, 1")
        a("s_cbranch_scc1 L_giveup2")
        for k in range(4):
            a(f"s_mov_b64 exec, s[{24+2*k}:{25+2*k}]")
            a(f"s_cbranch_execz L_pk{k}")
            a(f"buffer_load_dwordx4 {vr(X+4*k,4)}, v{ox}, s[36:39], s64 offen offset:{128*k} sc1")
            a(f"L_pk{k}:")
        a("s_mov_b64 exec, -1")
        a("s_waitcnt vmcnt(0)")
        b = Asm()
        for k in range(4):
            b(f"v_max3_u32 v{T+k}, v{X+4*k}, v{X+4*k+1}, v{X+4*k+2}")
        for k in range(4):
            b(f"v_max_u32 v{T+k}, v{T+k}, v{X+4*k+3}")
        for k in range(4):
            b(f"v_cmp_eq_u32 s[{24+2*k}:{25+2*k}], -1, v{T+k}")
        c = Asm()
        finalmath(c, X)
        nh = 2 if o["pk"] else 4
        b.lines += c.lines[:nh]
        b("s_or_b64 s[32:33], s[24:25], s[26:27]")
        b("s_or_b64 s[34:35], s[28:29], s[30:31]")
        b("s_or_b64 s[32:33], s[32:33], s[34:35]")
        b("s_cselect_b32 s94, s88, 0")
        b("s_cmp_eq_u32 s94, 1")
        b("s_cbranch_scc1 L_poll3" if o["boff"] else "s_cbranch_scc1 L_poll2")
        b.lines += c.lines[nh:]
        a.lines += hz.fix(b.lines)
        a("s_cmp_eq_u64 s[32:33], 0")
        a("s_cbranch_scc1 L_done")
        a("s_barrier")
        a("s_mov_b32 s88, 1")
        st(a, o, 6)
        a("s_branch L_poll2")
        if o["boff"]:
            a("L_poll3:")
            a("s_bcnt1_i32_b64 s94, s[32:33]")
            a(f"s_cmp_le_u32 s94, {o['boffn']}")
            a("s_cbranch_scc1 L_poll2")
            a(f"s_sleep {o['boff']}")
            a("s_branch L_poll2")
    else:
        def pollld(Xb):
            for k in range(4):
                a(f"buffer_load_dwordx4 {vr(Xb+4*k,4)}, v{ox}, s[36:39], s64 offen offset:{128*k} {o['pollsc']}")
        def pollmath(Xb):
            b = Asm()
            sent_check(b, Xb, 16, X0, X1)
            finalmath(b, Xb)
            a.lines += hz.fix(b.lines)
        a("L_poll:")
        pollld(X)
        a("L_poll2:")
        a("s_sub_u32 s58, s58, 1")
        a("s_cbranch_scc1 L_giveup2")
        pollld(X2)
        a("s_waitcnt vmcnt(4)")
        pollmath(X)
        a("s_cbranch_vccz L_done")
        pollld(X)
        a("s_waitcnt vmcnt(4)")
        pollmath(X2)
        a("s_cbranch_vccz L_done")
        a("s_cmp_eq_u32 s88, 0")
        a("s_cbranch_scc0 L_poll2")
        a("s_waitcnt vmcnt(0)")
        if o["thin"]:
            a("s_mov_b64 exec, -1")
        if o["fill"]:
            ldsspin(F_PROG, o["filln"], "L_sp5", "L_giveup2", sleep=1)
            pollld(X2)
        if o["eprio"]:
            a("s_setprio 0")
        a("s_barrier")
        a("s_mov_b32 s88, 1")
        st(a, o, 6)
        a("s_branch L_poll")
    a("L_done:")
    a(f"buffer_store_short v{O}, v{OA}, s[44:47], s66 offen {o['outsc']}")
    a("L_giveup2:")
    a("s_cmp_eq_u32 s88, 0")
    a("s_cbranch_scc0 L_fin")
    a("L_giveup:")
    a("s_barrier")
    a("L_fin:")
    if o["stamp"]:
        st(a, o, 7)
        dump_stamps(a, o, 8, WAVE, nwaves=NW)
    if o["amp"]:
        st(a, o, 7)
        a("s_waitcnt lgkmcnt(0)")
        j = o["amp"]
        a(f"s_sub_u32 s60, s{70+2*j}, s70")
        a(f"s_mul_i32 s60, s60, {o['mult']}")
        a(f"s_add_u32 s60, s60, {o['base']}")
        if not o["amph"]:
            a("s_cmp_ge_u32 s69, 256")
            a("s_cbranch_scc1 L_end")
        a("L_spin:")
        a("s_sleep 2")
        a("s_memrealtime s[88:89]")
        a("s_waitcnt lgkmcnt(0)")
        a("s_sub_u32 s88, s88, s70")
        a("s_cmp_lt_u32 s88, s60")
        a("s_cbranch_scc1 L_spin")
    a("L_end:")
    a("s_endpgm")


def gen9(o):
    a = Asm()
    main = NAME + "_kernel"
    a.lines.append((HEADER + f"; @launch grid=(256,1,1) block=(320,1,1) lds=17408" + DOC).rstrip())
    a('.amdgcn_target "amdgcn-amd-amdhsa--gfx950"')
    a(".text")
    a(f".globl {main}")
    kernel(a, o, main)
    a('.section .rodata,"a"')
    a(".p2align 6")
    kd(a, main, 256)
    return a.text()


DEF = dict(nt="nt", map=1, stamp=0, amp=0, amph=0, mult=0, base=6000, maxspin=1000000, mlsleep=16, ldssleep=4,
           pollat=3, fakexcc=0, w=8, budget=160, outsc="", we=0, wfrac=0, sprint=8, fastmask=0xaa, leadsleep=40, wpat='5', x=0, incr=0, alt=1, boff=0, boffn=24, probe=0, w0=0, ramp='7777777766666666', ctl=1, cp0=24, cpstep=4, c0=45, slope=137, wb=8, leadsleep2=16, dith=0, dn=2, t0mean=1, pk=1, probes='', ta=0, tb=0, tw=7, vtouch=0, vpat='', clrat=57, clrsc='', eprio=0, far=0, farn=1, thin=1, clr2at=0, pollsc='sc1', asc='', fill=1, filln=5, late=2)
if __name__ == "__main__":
    o = dict(DEF)
    for kv in sys.argv[2:]:
        k, v = kv.split("=")
        assert k in o, k
        o[k] = int(v, 0) if v.lstrip("-").replace("0x", "").isalnum() and v.lstrip("-")[0].isdigit() else v.replace("+", " ")
    open(sys.argv[1], "w").write(gen9(o))
```
